```python
import torch

def _softmax(x, axis=-1):
    return torch.softmax(x, dim=axis)
def _gelu(x):
    return torch.nn.functional.gelu(x, approximate="tanh")
def _silu(x):
    return torch.nn.functional.silu(x)
def _sigmoid(x):
    return torch.sigmoid(x)
def _layernorm(x, axis=-1, eps=1e-5):
    m = x.mean(dim=axis, keepdim=True)
    v = x.var(dim=axis, keepdim=True, unbiased=False)
    return (x - m) / torch.sqrt(v + eps)
def _scatter_add(tgt, idx, src, axis=0):
    return tgt.clone().index_add_(axis, idx, src)
def _segment_sum(src, seg, n):
    out = torch.zeros((n,) + src.shape[1:], dtype=src.dtype)
    return out.index_add_(0, seg, src)
def _pad(x, pw):
    flat = tuple(v for pair in reversed(pw) for v in pair)
    return torch.nn.functional.pad(x, flat)

kernel_name = 'concat_heads__ssm_conv_s4__mha_block__prompt'

def setup_inputs():

    _w = (lambda a: (lambda t: t.to(torch.bfloat16) if t.is_floating_point() else t)(torch.as_tensor(a)))
    def _A_setup():
        B, L, D, N = 1, 2048, 576, 128
        A_re = -(lambda _x: torch.exp(torch.as_tensor(_x)))((lambda *s: torch.randn(*s, dtype=torch.bfloat16) * 6.4)(D, N))
        A_im = torch.pi * (lambda *s: torch.randn(*s, dtype=torch.bfloat16) * 0.1)(D, N)
        B_re = (lambda *s: torch.randn(*s, dtype=torch.bfloat16) * 0.2)(D, N)
        B_im = (lambda *s: torch.randn(*s, dtype=torch.bfloat16) * 0.2)(D, N)
        C_re = (lambda *s: torch.randn(*s, dtype=torch.bfloat16) * 0.2)(D, N)
        C_im = (lambda *s: torch.randn(*s, dtype=torch.bfloat16) * 0.2)(D, N)
        log_dt = (lambda *s: torch.randn(*s, dtype=torch.bfloat16) * 0.1)(D) * 0.5 - 4.0
        Dskip = (lambda *s: torch.randn(*s, dtype=torch.bfloat16) * 0.1)(D)
        return {
            "u": _w((lambda *s: torch.randn(*s, dtype=torch.bfloat16) * 0.05)(B, L, D)),
            "A_re": _w(A_re),
            "A_im": _w(A_im),
            "B_re": _w(B_re),
            "B_im": _w(B_im),
            "C_re": _w(C_re),
            "C_im": _w(C_im),
            "log_dt": _w(log_dt),
            "Dskip": _w(Dskip),
        }
    _A_in = _A_setup()

    def _B_setup():
        B, S, D, H = 1, 2048, 576, 32
        return {
            "x": _w((lambda *s: torch.randn(*s, dtype=torch.bfloat16) * 0.2)(B, S, D)),
            "wqkv": _w((lambda *s: torch.randn(*s, dtype=torch.bfloat16) * 0.2)(D, 3 * D)),
            "wo": _w((lambda *s: torch.randn(*s, dtype=torch.bfloat16) * 0.05)(D, D)),
        }
    _B_in = _B_setup()

    return {
        "A_u": _A_in["u"],
        "A_A_re": _A_in["A_re"],
        "A_A_im": _A_in["A_im"],
        "A_B_re": _A_in["B_re"],
        "A_B_im": _A_in["B_im"],
        "A_C_re": _A_in["C_re"],
        "A_C_im": _A_in["C_im"],
        "A_log_dt": _A_in["log_dt"],
        "A_Dskip": _A_in["Dskip"],
        "B_x": _B_in["x"],
        "B_wqkv": _B_in["wqkv"],
        "B_wo": _B_in["wo"],
    }

def reference(A_u, A_A_re, A_A_im, A_B_re, A_B_im, A_C_re, A_C_im, A_log_dt, A_Dskip, B_x, B_wqkv, B_wo):
    def _A_ref(u, A_re, A_im, B_re, B_im, C_re, C_im, log_dt, Dskip):
        Bsz, L, D = u.shape
        dt = torch.exp(log_dt)[:, None]
        A = A_re + 1j * A_im
        Bc = B_re + 1j * B_im
        Cc = C_re + 1j * C_im
        logdA = dt * A
        dB = dt * Bc
        l = (lambda x, dt: x.to(dt))(torch.arange(L), A_re.dtype)
        P = torch.exp(logdA[:, :, None] * l[None, None, :])
        K = torch.einsum("dn,dnl,dn->dl", Cc, P, dB).real
        L2 = 2 * L
        Kp = _pad(K, ((0, 0), (0, L)))
        up = (lambda x, *d: x.permute(*d))(u, 0, 2, 1)
        up = _pad(up, ((0, 0), (0, 0), (0, L)))
        Kf = (lambda x, axes=(-2,-1): torch.fft.rfft2(x.float(), dim=axes))(Kp[:, None, :], axes=(-2, -1))
        Uf = (lambda x, axes=(-2,-1): torch.fft.rfft2(x.float(), dim=axes))(up[:, :, None, :], axes=(-2, -1))
        Yf = Uf * Kf[None, :, :, :]
        y = (lambda x, s, axes=(-2,-1): torch.fft.irfft2(x, s=s, dim=axes).to(torch.bfloat16))(Yf, (1, L2), axes=(-2, -1))[:, :, 0, :L]
        y = (lambda x, *d: x.permute(*d))(y, 0, 2, 1) + u * Dskip[None, None, :]
        return y

    def _B_ref(x, wqkv, wo):
        B, S, D = x.shape
        H = 32
        Dh = D // H
        qkv = (lambda x, *d: x.permute(*d))((x @ wqkv).reshape(B, S, 3, H, Dh), 2, 0, 3, 1, 4)
        q, k, v = qkv[0], qkv[1], qkv[2]
        scores = torch.einsum("bhqd,bhkd->bhqk", q, k) * (Dh ** -0.5)
        p = _softmax(scores, axis=-1)
        o = torch.einsum("bhqk,bhkd->bhqd", p, v)
        return (lambda x, *d: x.permute(*d))(o, 0, 2, 1, 3).reshape(B, S, D) @ wo

    a = _A_ref(A_u, A_A_re, A_A_im, A_B_re, A_B_im, A_C_re, A_C_im, A_log_dt, A_Dskip)
    b = _B_ref(B_x, B_wqkv, B_wo)
    return torch.concatenate([a, b], axis=-1)
```

```python
class Asm:
    def __init__(self):
        self.lines = []
        self._lab = 0
    def __call__(self, s):
        for l in s.split('\n'):
            l = l.rstrip()
            if l.strip():
                self.lines.append(l if l.strip().endswith(':') or l.startswith('.') or l.startswith(';') else '    ' + l.strip())
    def label(self, name):
        self.lines.append(name + ':')
    def newlabel(self, base):
        self._lab += 1
        return f'L_{base}_{self._lab}'
    def comment(self, s):
        self.lines.append('    ; ' + s)
    def text(self):
        return '\n'.join(self.lines) + '\n'

def v(i, n=1):
    return f'v{i}' if n == 1 else f'v[{i}:{i+n-1}]'
def s(i, n=1):
    return f's{i}' if n == 1 else f's[{i}:{i+n-1}]'

class RegAlloc:
    def __init__(self, start, limit):
        self.next = start; self.limit = limit; self.hi = start
    def get(self, n=1, align=1):
        if n > 1 and align == 1: align = 2
        self.next = (self.next + align - 1)//align*align
        r = self.next; self.next += n
        assert self.next <= self.limit, f'out of registers {self.next}'
        self.hi = max(self.hi, self.next)
        return r
    def mark(self): return self.next
    def release(self, m): self.next = m

def f32bits(x):
    import struct
    return struct.unpack('<I', struct.pack('<f', x))[0]
def hexf(x):
    return '0x%08x' % f32bits(x)

def interleave(main, fill):
    out = []
    n = len(main); m = len(fill); j = 0
    for i, x in enumerate(main):
        out.append(x)
        tgt = (i+1)*m//n
        while j < tgt:
            out.append(fill[j]); j += 1
    out += fill[j:]
    return out
```

```python
T = 2048
D = 576
H = 32
DH = 18
N = 128

KV_CHUNK = 18944
KV_HEAD = 8 * KV_CHUNK
WS_KV = 0
WS_QM = WS_KV + H * KV_HEAD
WS_QT = WS_QM + H * 65536
WS_O = WS_QT + H * 8192
WS_UT = WS_O + 128 * 18432
KG_STRIDE = 4224
WS_KG = WS_UT + D * 8192
WS_YT = WS_KG + D * KG_STRIDE
WS_FLAG = WS_YT + D * 4096
WS_END = WS_FLAG + 4096
WS_STAMP = (WS_END + 4095) // 4096 * 4096
WS_SIZE = WS_STAMP + (1 << 20)

X_BYTES = T * D * 2
W_BYTES = D * 3 * D * 2
WO_BYTES = D * D * 2
OUT_BYTES = T * 2 * D * 2
```

```python
import math
from asmlib import *
from layout import *

sWG, sWAVE = 2, 3
SRD_X, SRD_W, SRD_WS, SRD_OUT, SRD_U, SRD_WO = 8, 12, 16, 20, 24, 28
sPAR = 32
sDBG = 48
sWSP = 50
sXCD, sIDX = 60, 61
vTID, vLANE = 0, 1
OOB = 0x7ffffff0

LOG2E = 1.4426950408889634


def prologue(a, endlab):
    a(f'''
    s_cmp_ge_u32 s2, 256
    s_cbranch_scc1 {endlab}
    s_load_dwordx2 s[4:5], s[0:1], 0
    s_load_dwordx16 s[32:47], s[0:1], 8
    s_load_dwordx8 s[52:59], s[0:1], 72
    s_load_dwordx4 s[48:51], s[0:1], 104
    v_lshrrev_b32 v2, 6, v0
    v_and_b32 v1, 63, v0
    s_and_b32 s{sXCD}, s2, 7
    v_readfirstlane_b32 s3, v2
    s_lshr_b32 s{sIDX}, s2, 3
    s_mov_b32 s{SRD_X+2}, {X_BYTES}
    s_mov_b32 s{SRD_X+3}, 0x00020000
    s_mov_b32 s{SRD_W+2}, {W_BYTES}
    s_mov_b32 s{SRD_W+3}, 0x00020000
    s_mov_b32 s{SRD_WS+2}, {WS_SIZE}
    s_mov_b32 s{SRD_WS+3}, 0x00020000
    s_mov_b32 s{SRD_OUT+2}, {OUT_BYTES}
    s_mov_b32 s{SRD_OUT+3}, 0x00020000
    s_mov_b32 s{SRD_U+2}, {X_BYTES}
    s_mov_b32 s{SRD_U+3}, 0x00020000
    s_mov_b32 s{SRD_WO+2}, {WO_BYTES}
    s_mov_b32 s{SRD_WO+3}, 0x00020000
    s_waitcnt lgkmcnt(0)
    s_mov_b32 s{SRD_U}, s4
    s_mov_b32 s{SRD_U+1}, s5
    s_mov_b32 s{SRD_X}, s52
    s_mov_b32 s{SRD_X+1}, s53
    s_mov_b32 s{SRD_W}, s54
    s_mov_b32 s{SRD_W+1}, s55
    s_mov_b32 s{SRD_WO}, s56
    s_mov_b32 s{SRD_WO+1}, s57
    s_mov_b32 s{SRD_OUT}, s58
    s_mov_b32 s{SRD_OUT+1}, s59
    s_mov_b32 s{SRD_WS}, s50
    s_mov_b32 s{SRD_WS+1}, s51
    ''')


def stamp(a, slot, on):
    if not on:
        return
    a(f'''
    s_memtime s[96:97]
    s_lshl_b32 s98, s2, 3
    s_add_u32 s98, s98, s3
    s_lshl_b32 s98, s98, 7
    s_add_u32 s98, s98, {WS_STAMP + slot*8}
    v_mov_b32 v254, 0
    s_waitcnt lgkmcnt(0)
    v_mov_b32 v252, s96
    v_mov_b32 v253, s97
    s_mov_b64 s[96:97], exec
    s_mov_b64 exec, 1
    buffer_store_dwordx2 v[252:253], v254, s[{SRD_WS}:{SRD_WS+3}], s98 offen
    s_mov_b64 exec, s[96:97]
    ''')


def dma(srd, vaddr, soff):
    return f'buffer_load_dwordx4 v{vaddr}, s[{srd}:{srd+3}], {soff} offen lds'


def gemm_setup(a):
    a(f'''
    s_and_b32 s62, s{sXCD}, 3
    s_lshl_b32 s62, s62, 2
    s_and_b32 s64, s{sIDX}, 3
    s_add_u32 s62, s62, s64
    s_lshr_b32 s63, s{sXCD}, 2
    s_mul_i32 s63, s63, 6
    s_lshr_b32 s64, s{sIDX}, 2
    s_add_u32 s63, s63, s64
    ''')


def gemm_phase(a, role, fh, ST):
    ra = RegAlloc(2, 250)
    vX0, vX1, vW0, vW1, vWt = [ra.get() for _ in range(5)]
    vXa = [ra.get() for _ in range(4)]
    vWa, vTa = ra.get(), ra.get()
    t0, t1, t2, t3 = [ra.get() for _ in range(4)]
    nt = 3 if fh == 0 else 2
    fX = [ra.get(4, 4) for _ in range(2)]
    fW = [[ra.get(4, 4) for _ in range(nt)] for _ in range(2)]
    acc = [ra.get(16, 4) for _ in range(nt)]
    sXo, sWo, sTo, sM, sMt = 64, 65, 66, 67, 68
    qk = role == 'qk'
    a(f'''
    v_lshrrev_b32 v{t0}, 3, v1
    v_and_b32 v{t1}, 7, v1
    v_lshrrev_b32 v{t2}, 1, v{t0}
    v_xor_b32 v{t1}, v{t1}, v{t2}
    v_mul_u32_u24 v{t0}, 1152, v{t0}
    v_lshl_add_u32 v{vX0}, v{t1}, 4, v{t0}
    v_xor_b32 v{t1}, 4, v{t1}
    v_lshl_add_u32 v{vX1}, v{t1}, 4, v{t0}
    v_add_u32 v{vX1}, {8*1152}, v{vX1}
    s_lshl_b32 s{sXo}, s62, 3
    s_add_u32 s{sXo}, s{sXo}, s3
    s_mul_i32 s{sXo}, s{sXo}, {16*1152}
    s_lshl_b32 s{sM}, s3, 11
    s_add_u32 m0, s{sM}, 0
    v_lshrrev_b32 v{t0}, 4, v1
    ''')
    a(dma(SRD_X, vX0, f's{sXo}'))
    a(f'''
    s_add_u32 m0, s{sM}, 1024
    v_bfe_u32 v{t1}, v1, 2, 2
    ''')
    a(dma(SRD_X, vX1, f's{sXo}'))
    a(f'''
    v_and_b32 v{t2}, 3, v1
    v_mul_u32_u24 v{t0}, {72 if qk else 64}, v{t0}
    v_mul_u32_u24 v{t1}, 3456, v{t1}
    v_lshl_add_u32 v{t0}, v{t2}, 4, v{t0}
    v_add_u32 v{vW0}, v{t0}, v{t1}
    ''')
    if qk:
        a(f'''
        v_lshrrev_b32 v{t3}, 1, v{t2}
        v_lshl_add_u32 v{vW0}, v{t3}, 3, v{vW0}
        ''')
    a(f'''
    v_add_u32 v{vW1}, {4*3456}, v{vW0}
    s_mul_i32 s{sWo}, s63, 288
    s_mul_i32 s69, s3, {8*3456}
    s_add_u32 s{sTo}, s{sWo}, 0
    s_add_u32 s{sWo}, s{sWo}, s69
    s_add_u32 m0, s{sM}, 65536
    s_nop 0
    ''')
    a(dma(SRD_W, vW0, f's{sWo}'))
    a(f's_add_u32 m0, s{sM}, {65536+1024}\ns_nop 0')
    a(dma(SRD_W, vW1, f's{sWo}'))
    if fh == 1:
        a(f'''
        v_lshrrev_b32 v{t0}, 2, v1
        v_mul_u32_u24 v{t0}, 3456, v{t0}
        v_mul_u32_u24 v{t2}, {72 if qk else 16}, v{t2}
        v_add_u32 v{t0}, {32 if qk else 256}, v{t0}
        v_add_u32 v{vWt}, v{t0}, v{t2}
        s_sub_u32 s{sMt}, s3, 4
        s_mul_i32 s69, s{sMt}, {16*3456}
        s_add_u32 s{sTo}, s{sTo}, s69
        s_lshl_b32 s{sMt}, s{sMt}, 10
        s_add_u32 m0, s{sMt}, 131072
        s_nop 0
        ''')
        a(dma(SRD_W, vWt, f's{sTo}'))
    nld = 4 if fh == 0 else 5

    def issue(st):
        sl = st & 3
        L = [f's_add_u32 s{sXo}, s{sXo}, 128\ns_add_u32 m0, s{sM}, {sl*16384}\ns_add_u32 s{sWo}, s{sWo}, {64*3456}\n' + dma(SRD_X, vX0, f's{sXo}'),
             f's_add_u32 m0, s{sM}, {sl*16384+1024}\ns_nop 0\n' + dma(SRD_X, vX1, f's{sXo}'),
             f's_add_u32 m0, s{sM}, {65536+sl*16384}\ns_nop 0\n' + dma(SRD_W, vW0, f's{sWo}'),
             f's_add_u32 m0, s{sM}, {65536+sl*16384+1024}\ns_nop 0\n' + dma(SRD_W, vW1, f's{sWo}')]
        if fh == 1:
            L.append(f's_add_u32 m0, s{sMt}, {131072+sl*4096}\ns_add_u32 s{sTo}, s{sTo}, {64*3456}\n' + dma(SRD_W, vWt, f's{sTo}'))
        return L
    for st in (1, 2, 3):
        for x in issue(st):
            a(x)
    a(f'''
    v_and_b32 v{t0}, 31, v1
    v_lshrrev_b32 v{t1}, 5, v1
    v_bfe_u32 v{t2}, v1, 1, 3
    v_xor_b32 v{t2}, v{t2}, v{t1}
    s_and_b32 s69, s3, 3
    s_lshl_b32 s69, s69, 12
    v_lshlrev_b32 v{t0}, 7, v{t0}
    v_lshl_add_u32 v{t0}, v{t2}, 4, v{t0}
    v_add_u32 v{vXa[0]}, s69, v{t0}
    v_xor_b32 v{vXa[1]}, 32, v{vXa[0]}
    v_xor_b32 v{vXa[2]}, 64, v{vXa[0]}
    v_xor_b32 v{vXa[3]}, 0x60, v{vXa[0]}
    v_bfe_u32 v{t0}, v1, 2, 2
    v_and_b32 v{t2}, 3, v1
    v_bfe_u32 v{t3}, v1, 4, 1
    v_lshlrev_b32 v{t0}, 6, v{t0}
    v_lshl_add_u32 v{vWa}, v{t1}, 11, v{t0}
    v_lshl_add_u32 v{vWa}, v{t3}, 5, v{vWa}
    v_lshl_add_u32 v{vWa}, v{t2}, 3, v{vWa}
    v_add_u32 v{vWa}, {65536 + fh*512}, v{vWa}
    ''')
    if fh == 0:
        a(f'''
        v_lshl_add_u32 v{vTa}, v{t1}, 9, v{t0}
        v_lshl_add_u32 v{vTa}, v{t3}, {3 if qk else 5}, v{vTa}
        v_lshl_add_u32 v{vTa}, v{t2}, {4 if qk else 3}, v{vTa}
        v_add_u32 v{vTa}, 131072, v{vTa}
        ''')

    def reads(st, ks):
        sl = st & 3; b = ks & 1
        L = [f'ds_read_b128 {v(fX[b],4)}, v{vXa[ks]} offset:{sl*16384}']
        for f in range(nt):
            for u in range(2):
                if f < 2:
                    L.append(f'ds_read_b64_tr_b16 {v(fW[b][f]+2*u,2)}, v{vWa} offset:{sl*16384+(4*ks+u)*1024+f*256}')
                else:
                    L.append(f'ds_read_b64_tr_b16 {v(fW[b][f]+2*u,2)}, v{vTa} offset:{sl*4096+(4*ks+u)*256}')
        return L

    def mfmas(st, ks):
        b = ks & 1
        L = []
        for f in range(nt):
            A, B = (fW[b][f], fX[b]) if qk else (fX[b], fW[b][f])
            c = '0' if (st == 0 and ks == 0) else v(acc[f], 16)
            L.append(f'v_mfma_f32_32x32x16_bf16 {v(acc[f],16)}, {v(A,4)}, {v(B,4)}, {c}')
        return L
    nrd = 1 + 2*nt
    a(f's_waitcnt vmcnt({3*nld})\ns_barrier')
    stamp(a, 1, ST)
    for x in reads(0, 0):
        a(x)
    for st in range(9):
        for ks in range(4):
            if ks < 3:
                for x in reads(st, ks+1):
                    a(x)
                a(f's_waitcnt lgkmcnt({nrd})')
                for x in mfmas(st, ks):
                    a(x)
            else:
                if st < 8:
                    left = min(st+3, 8) - (st+1)
                    a(f's_waitcnt vmcnt({left*nld}) lgkmcnt(0)\ns_barrier')
                    for x in reads(st+1, 0):
                        a(x)
                    fill = issue(st+4) if st+4 <= 8 else []
                    for x in interleave(mfmas(st, ks), fill):
                        a(x)
                else:
                    a('s_waitcnt lgkmcnt(0)')
                    for x in mfmas(st, ks):
                        a(x)
    stamp(a, 2, ST)
    ws = f's[{SRD_WS}:{SRD_WS+3}]'
    pk = fX[0]
    assert fX[1] == fX[0] + 4
    a(f'''
    s_and_b32 s69, s3, 3
    s_and_b32 s70, s63, 3
    s_lshl_b32 s70, s70, 3
    s_lshr_b32 s71, s62, 1
    s_mul_i32 s71, s71, {KV_CHUNK}
    s_and_b32 s72, s62, 1
    ''')
    if qk:
        sc = hexf(DH ** -0.5 * LOG2E)
        a(f'''
        s_lshl_b32 s73, s72, 2
        s_add_u32 s73, s73, s69
        s_lshl_b32 s73, s73, 10
        s_add_u32 s73, s73, s71
        s_lshl_b32 s74, s62, 2
        s_add_u32 s74, s74, s69
        s_lshl_b32 s74, s74, 10
        s_add_u32 s74, s74, {WS_QM}
        s_lshl_b32 s75, s72, 9
        s_add_u32 s75, s75, s71
        s_add_u32 s75, s75, {WS_KV + 8192}
        s_lshl_b32 s76, s62, 9
        s_add_u32 s76, s76, {WS_QT}
        s_mov_b32 s78, {KV_HEAD}
        s_cmp_lt_u32 s63, 4
        s_cselect_b32 s73, s74, s73
        s_cselect_b32 s75, s76, s75
        s_cselect_b32 s74, 65536, s78
        s_cselect_b32 s76, 8192, s78
        s_cselect_b32 s77, {sc}, 1.0
        s_add_u32 s78, s70, {4*fh}
        s_mul_i32 s78, s78, s74
        s_add_u32 s73, s73, s78
        v_lshlrev_b32 v{t0}, 4, v1
        s_nop 7
        ''')
        for f in range(2):
            for hb in range(2):
                r = acc[f] + 8*hb
                d = pk + 4*hb
                for j in range(8):
                    a(f'v_mul_f32 v{r+j}, s77, v{r+j}')
                for j in range(4):
                    a(f'v_cvt_pk_bf16_f32 v{d+j}, v{r+2*j}, v{r+2*j+1}')
                a(f'buffer_store_dwordx4 {v(d,4)}, v{t0}, {ws}, s73 offen')
                if not (f == 1 and hb == 1):
                    a(f's_add_u32 s73, s73, s74')
        if fh == 0:
            r = acc[2]
            a(f'''
            s_lshr_b32 s78, s69, 1
            s_lshl_b32 s78, s78, 8
            s_add_u32 s75, s75, s78
            s_and_b32 s78, s69, 1
            s_lshl_b32 s78, s78, 2
            s_add_u32 s75, s75, s78
            s_mul_i32 s78, s70, s76
            s_add_u32 s75, s75, s78
            s_lshl_b32 s78, s76, 1
            v_lshrrev_b32 v{t1}, 5, v1
            v_and_b32 v{t2}, 31, v1
            v_mul_lo_u32 v{t1}, v{t1}, s78
            v_lshl_add_u32 v{t1}, v{t2}, 3, v{t1}
            s_mul_i32 s78, s76, 3
            ''')
            for j in range(8):
                a(f'v_mul_f32 v{r+j}, s77, v{r+j}')
            for e in range(4):
                a(f'v_cvt_pk_bf16_f32 v{r+8+e}, v{r+2*e}, v{r+2*e+1}')
            for e in range(4):
                a(f'buffer_store_dword v{r+8+e}, v{t1}, {ws}, s75 offen')
                if e < 3:
                    a(f's_add_u32 s75, s75, {"s76" if e != 1 else "s78"}')
    else:
        a(f'''
        s_lshl_b32 s73, s72, 2
        s_add_u32 s73, s73, s69
        s_mul_i32 s73, s73, 1216
        s_add_u32 s73, s73, s71
        s_mul_i32 s74, s70, {KV_HEAD}
        s_add_u32 s73, s73, s74
        s_add_u32 s73, s73, {WS_KV + 9216}
        s_mov_b32 s74, {KV_HEAD - 18*16}
        v_and_b32 v{t0}, 31, v1
        v_lshrrev_b32 v{t1}, 5, v1
        v_mul_u32_u24 v{t1}, 304, v{t1}
        s_nop 3
        ''')
        tiles = [2*fh, 2*fh+1] + ([4] if fh == 0 else [])
        for fi, f in enumerate(tiles):
            va = vXa[fi]
            a(f'''
            v_add_u32 v{t2}, {32*f}, v{t0}
            v_mul_u32_u24 v{t3}, 57, v{t2}
            v_lshrrev_b32 v{t3}, 10, v{t3}
            v_mul_lo_u32 v{t3}, v{t3}, s74
            v_lshl_add_u32 v{t2}, v{t2}, 4, v{t1}
            v_add_u32 v{va}, v{t2}, v{t3}
            ''')
            if f == 4:
                a(f'''
                s_mov_b32 s75, {KV_HEAD}
                v_subrev_u32 v{t2}, 16, v{t0}
                v_mul_lo_u32 v{t2}, v{t2}, s75
                v_add_u32 v{t2}, v{t2}, v{t1}
                v_add_u32 v{t2}, {18*16}, v{t2}
                v_cmp_le_u32 s[76:77], 16, v{t0}
                v_cmp_le_u32 s[78:79], 24, v{t0}
                v_mov_b32 v{t3}, {OOB}
                v_cndmask_b32 v{va}, v{va}, v{t2}, s[76:77]
                v_cndmask_b32 v{va}, v{va}, v{t3}, s[78:79]
                v_mov_b32 v{t3}, 0x3f803f80
                ''')
            for m in range(2):
                r = acc[fi] + 8*m
                d = pk + 4*m
                for j in range(4):
                    a(f'v_cvt_pk_bf16_f32 v{d+j}, v{r+2*j}, v{r+2*j+1}')
                if f == 4:
                    for j in range(4):
                        a(f'v_cndmask_b32 v{d+j}, v{d+j}, v{t3}, s[76:77]')
                a(f'buffer_store_dwordx4 {v(d,4)}, v{va}, {ws}, s73 offen offset:{608*m}')
    stamp(a, 3, ST)


def attn_setup(a):
    a(f'''
    s_lshl_b32 s62, s{sXCD}, 2
    s_lshr_b32 s63, s{sIDX}, 3
    s_add_u32 s62, s62, s63
    s_and_b32 s63, s{sIDX}, 7
    ''')


class AttnRegs:
    def __init__(self):
        ra = RegAlloc(2, 250)
        self.vKa, self.vTa, self.vVa = ra.get(), ra.get(), ra.get()
        self.t = [ra.get() for _ in range(5)]
        self.Qm = ra.get(4, 4)
        self.Qt = [ra.get(2, 2) for _ in range(4)]
        self.Km = ra.get(4, 4)
        self.V0 = ra.get(4, 4)
        self.V1 = ra.get(4, 4)
        self.Kt = ra.get(2, 2)
        self.T = ra.get(4, 2)
        self.P = ra.get(8, 4)
        self.S = [ra.get(16, 4), ra.get(16, 4)]
        self.O = ra.get(16, 4)
        self.NM = ra.get(16, 4)
        self.hi = ra.hi


def attn_issue_loads(a, R):
    t = R.t
    ws = f's[{SRD_WS}:{SRD_WS+3}]'
    a(f'''
    v_lshlrev_b32 v{R.vKa}, 4, v1
    s_lshl_b32 s64, s63, 3
    s_add_u32 s64, s64, s3
    s_lshl_b32 s65, s62, 16
    s_lshl_b32 s66, s64, 10
    s_add_u32 s65, s65, s66
    s_add_u32 s65, s65, {WS_QM}
    buffer_load_dwordx4 {v(R.Qm,4)}, v{R.vKa}, {ws}, s65 offen
    s_lshl_b32 s65, s62, 13
    s_lshr_b32 s66, s64, 1
    s_lshl_b32 s66, s66, 8
    s_add_u32 s65, s65, s66
    s_and_b32 s66, s64, 1
    s_lshl_b32 s66, s66, 2
    s_add_u32 s65, s65, s66
    s_add_u32 s65, s65, {WS_QT}
    v_and_b32 v{t[0]}, 31, v1
    v_lshlrev_b32 v{t[1]}, 3, v{t[0]}
    buffer_load_dword v{t[4]}, v{t[1]}, {ws}, s65 offen
    s_mul_i32 s65, s62, {KV_HEAD}
    s_lshl_b32 s66, s3, 10
    s_add_u32 s65, s65, s66
    s_add_u32 m0, s66, 0
    s_add_u32 s65, s65, {WS_KV}
    ''')
    for i in range(19):
        a(dma(SRD_WS, R.vKa, 's65'))
        if i < 18:
            a(f's_add_u32 m0, s66, {(i+1)*8192}\ns_add_u32 s65, s65, 8192')


def attn_phase(a, R, ST):
    t = R.t
    ws = f's[{SRD_WS}:{SRD_WS+3}]'
    sC, sFLAG = 67, 68
    a(f'''
    v_lshlrev_b32 v{R.vTa}, 3, v1
    v_add_u32 v{R.vTa}, 8192, v{R.vTa}
    v_lshrrev_b32 v{t[1]}, 5, v1
    v_mul_u32_u24 v{t[1]}, 304, v{t[1]}
    v_subrev_u32 v{t[2]}, 20, v{t[0]}
    v_cmp_gt_u32 s[70:71], 8, v{t[2]}
    v_cmp_lt_u32 s[72:73], 18, v{t[0]}
    v_cmp_gt_u32 s[74:75], 32, v1
    v_cndmask_b32 v{t[2]}, 4, 0, s[70:71]
    v_cndmask_b32 v{t[2]}, v{t[0]}, v{t[2]}, s[72:73]
    v_lshl_add_u32 v{R.vVa}, v{t[2]}, 4, v{t[1]}
    v_add_u32 v{R.vVa}, 9216, v{R.vVa}
    s_mov_b32 s{sFLAG}, 0
    ''')
    for j in range(16):
        a(f'v_mov_b32 v{R.NM+j}, 0')
    a(f's_waitcnt vmcnt(19)')
    a(f'''
    v_cndmask_b32 v{R.Qt[0]}, 0, v{t[4]}, s[74:75]
    v_mov_b32 v{R.Qt[0]+1}, 0
    v_mov_b32 v{R.Qt[1]}, 0
    v_cndmask_b32 v{R.Qt[1]+1}, 0, v{t[4]}, s[74:75]
    v_cndmask_b32 v{R.Qt[2]}, v{t[4]}, 0, s[74:75]
    v_mov_b32 v{R.Qt[2]+1}, 0
    v_mov_b32 v{R.Qt[3]}, 0
    v_cndmask_b32 v{R.Qt[3]+1}, v{t[4]}, 0, s[74:75]
    s_waitcnt vmcnt(16)
    s_barrier
    ''')
    stamp(a, 5, ST)
    Lrun, Lloop, Lredo, Ldone = a.newlabel('arun'), a.newlabel('aloop'), a.newlabel('aredo'), a.newlabel('adone')
    a.label(Lrun)

    def ldK(tau): return f'ds_read_b128 {v(R.Km,4)}, v{R.vKa} offset:{(tau>>3)*KV_CHUNK + (tau&7)*1024}'
    def ldT(g): return f'ds_read_b64 {v(R.Kt,2)}, v{R.vTa} offset:{(g>>1)*KV_CHUNK + (g&1)*512}'
    def ldV(tau, m): return f'ds_read_b128 {v(R.V1 if m else R.V0,4)}, v{R.vVa} offset:{(tau>>3)*KV_CHUNK + (tau&7)*1216 + m*608}'
    def mA(tau): return f'v_mfma_f32_32x32x16_bf16 {v(R.S[tau&1],16)}, {v(R.Km,4)}, {v(R.Qm,4)}, {v(R.NM,16)}'
    def mB(tau): return f'v_mfma_f32_32x32x8_bf16 {v(R.S[tau&1],16)}, {v(R.Kt,2)}, {v(R.Qt[tau&3],2)}, {v(R.S[tau&1],16)}'
    def mV(m): return f'v_mfma_f32_32x32x16_bf16 {v(R.O,16)}, {v(R.V1 if m else R.V0,4)}, {v(R.P+4*m,4)}, {v(R.O,16)}'
    a(ldK(0)); a(ldT(0))
    for j in range(16):
        a(f'v_mov_b32 v{R.O+j}, 0')
    for j in range(4):
        a(f'v_mov_b32 v{R.V1+j}, 0\nv_mov_b32 v{R.P+4+j}, 0')
    a(f'v_mov_b32 v{R.T+2}, 0\nv_mov_b32 v{R.T+3}, 0\ns_mov_b32 s{sC}, 0')
    a('s_waitcnt lgkmcnt(0)')
    a(mA(0)); a(ldK(1)); a(mB(0))
    a(f'ds_read_b32 v{t[3]}, v{R.vKa}')
    a(ldV(0, 0))
    a('s_nop 7\ns_nop 3')
    a('.p2align 6')
    a.label(Lloop)
    q = ['K', 'V1', 'V0']

    def wait(name):
        if name in q:
            i = q.index(name)
            n = len(q) - 1 - i
            del q[:i+1]
            return f's_waitcnt lgkmcnt({n})'
        return None
    a(wait('K'))
    for tau in range(8):
        S = R.S[tau & 1]; Tt = R.T; P = R.P
        def e(i): return f'v_exp_f32 v{Tt+(i&3)}, v{S+i}'
        def c(i): return f'v_cvt_pk_bf16_f32 v{P+i}, v{Tt+((2*i)&3)}, v{Tt+((2*i)&3)+1}'
        if tau == 5:
            Lnb, Lw0 = a.newlabel('nobar'), a.newlabel('w0')
            a(f'''
            s_add_u32 s69, s{sC}, s{sFLAG}
            s_cmp_gt_u32 s69, 1
            s_cbranch_scc1 {Lnb}
            s_waitcnt vmcnt(14)
            s_cmp_eq_u32 s69, 0
            s_cbranch_scc1 {Lw0}
            s_waitcnt vmcnt(0)
            ''')
            a.label(Lw0)
            a('s_barrier')
            a.label(Lnb)
        a(mA(tau+1)); a(ldK(tau+2)); q.append('K')
        a(c(7)); a(e(0)); a(e(1)); a(e(2)); a(c(0)); a(e(3))
        w = wait('T')
        a(w if w else 's_nop 0')
        a(mB(tau+1))
        if ((tau+1) & 3) == 3:
            a(ldT((tau+2) >> 2)); q.append('T')
        a(c(1)); a(e(4)); a(e(5)); a(e(6)); a(c(2)); a(e(7))
        w = wait('V1'); a(w if w else 's_nop 0')
        a(mV(1)); a(ldV(tau, 1)); q.append('V1')
        a(c(3)); a(e(8)); a(e(9)); a(e(10)); a(c(4)); a(e(11))
        w = wait('V0'); a(w if w else 's_nop 0')
        a(mV(0)); a(ldV(tau+1, 0)); q.append('V0')
        a(c(5)); a(e(12)); a(e(13))
        if tau == 7:
            a(f's_add_u32 s{sC}, s{sC}, 1')
        a(e(14))
        if tau == 7:
            a(f's_cmp_lt_u32 s{sC}, 8')
        a(c(6)); a(e(15))
        if tau < 7:
            a(wait('K'))
    assert q == ['K', 'V1', 'V0'], q
    a(f'''
    v_add_u32 v{R.vKa}, {KV_CHUNK}, v{R.vKa}
    v_add_u32 v{R.vTa}, {KV_CHUNK}, v{R.vTa}
    v_add_u32 v{R.vVa}, {KV_CHUNK}, v{R.vVa}
    s_cbranch_scc1 {Lloop}
    v_cvt_pk_bf16_f32 v{R.P+7}, v{R.T+2}, v{R.T+3}
    s_waitcnt lgkmcnt(0)
    v_subrev_u32 v{R.vKa}, {8*KV_CHUNK}, v{R.vKa}
    ''')
    a(mV(1))
    a(f'''
    v_subrev_u32 v{R.vTa}, {8*KV_CHUNK}, v{R.vTa}
    v_subrev_u32 v{R.vVa}, {8*KV_CHUNK}, v{R.vVa}
    s_nop 9
    ''')
    stamp(a, 6, ST)
    O = R.O
    a(f'''
    v_mov_b32 v{t[0]}, v{O+10}
    v_mov_b32 v{t[1]}, v{O+10}
    v_max3_f32 v{t[2]}, abs(v{O}), abs(v{O+1}), abs(v{O+2})
    v_max3_f32 v{t[3]}, abs(v{O+3}), abs(v{O+4}), abs(v{O+5})
    v_permlane32_swap_b32 v{t[0]}, v{t[1]}
    v_max3_f32 v{t[2]}, v{t[2]}, abs(v{O+6}), abs(v{O+7})
    v_max3_f32 v{t[3]}, v{t[3]}, abs(v{O+8}), abs(v{O+9})
    s_cmp_lg_u32 s{sFLAG}, 0
    s_cbranch_scc1 {Ldone}
    v_max_f32 v{t[2]}, v{t[2]}, v{t[3]}
    s_mov_b32 s69, {hexf(2.0**-64)}
    s_mov_b32 s76, {hexf(2.0**64)}
    s_mov_b32 s77, {hexf(2.0**126)}
    v_cmp_nle_f32 s[70:71], s69, v{t[0]}
    v_cmp_nge_f32 s[72:73], s76, v{t[0]}
    v_cmp_nge_f32 vcc, s77, v{t[2]}
    s_or_b64 s[70:71], s[70:71], s[72:73]
    s_or_b64 vcc, vcc, s[70:71]
    s_cbranch_vccnz {Lredo}
    ''')
    a.label(Ldone)
    a(f'''
    v_rcp_f32 v{t[0]}, v{t[0]}
    s_lshl_b32 s64, s63, 4
    s_lshl_b32 s65, s3, 1
    s_add_u32 s64, s64, s65
    s_mul_i32 s64, s64, 18432
    s_add_u32 s64, s64, {WS_O}
    s_lshl_b32 s65, s62, 9
    s_add_u32 s65, s65, s64
    s_lshr_b32 s66, s62, 2
    s_lshl_b32 s66, s66, 8
    s_add_u32 s64, s64, s66
    s_and_b32 s66, s62, 3
    s_lshl_b32 s66, s66, 2
    s_add_u32 s64, s64, s66
    s_add_u32 s64, s64, 16384
    v_bfe_u32 v{t[1]}, v1, 4, 1
    v_and_b32 v{t[2]}, 15, v1
    v_mul_u32_u24 v{t[1]}, 18432, v{t[1]}
    v_lshl_add_u32 v{t[1]}, v{t[2]}, 4, v{t[1]}
    v_lshrrev_b32 v{t[2]}, 5, v1
    v_lshl_add_u32 v{t[2]}, v{t[2]}, 8, v{t[1]}
    v_mov_b32 v{t[3]}, {OOB}
    v_cndmask_b32 v{t[1]}, v{t[3]}, v{t[1]}, s[74:75]
    ''')
    for j in range(10):
        a(f'v_mul_f32 v{O+j}, v{t[0]}, v{O+j}')
    for j in range(5):
        a(f'v_cvt_pk_bf16_f32 v{R.P+j}, v{O+2*j}, v{O+2*j+1}')
    a(f'''
    buffer_store_dwordx4 {v(R.P,4)}, v{t[2]}, {ws}, s65 offen
    buffer_store_dword v{R.P+4}, v{t[1]}, {ws}, s64 offen
    ''')
    stamp(a, 7, ST)

    def redo():
        Lm = a.newlabel('amax')
        S = R.S[0]
        a.label(Lredo)
        a(f'''
        v_mov_b32 v{t[2]}, 0xff800000
        s_mov_b32 s{sC}, 0
        ''')
        a.label(Lm)
        for tau in range(8):
            a(ldK(tau))
            if (tau & 3) == 0:
                a(ldT(tau >> 2))
            a('s_waitcnt lgkmcnt(0)')
            a(f'v_mfma_f32_32x32x16_bf16 {v(S,16)}, {v(R.Km,4)}, {v(R.Qm,4)}, 0')
            a(f'v_mfma_f32_32x32x8_bf16 {v(S,16)}, {v(R.Kt,2)}, {v(R.Qt[tau&3],2)}, {v(S,16)}')
            a('s_nop 11')
            for j in range(8):
                a(f'v_max3_f32 v{t[2]}, v{t[2]}, v{S+2*j}, v{S+2*j+1}')
        a(f'''
        v_add_u32 v{R.vKa}, {KV_CHUNK}, v{R.vKa}
        v_add_u32 v{R.vTa}, {KV_CHUNK}, v{R.vTa}
        s_add_u32 s{sC}, s{sC}, 1
        s_cmp_lt_u32 s{sC}, 8
        s_cbranch_scc1 {Lm}
        v_mov_b32 v{t[3]}, v{t[2]}
        v_subrev_u32 v{R.vKa}, {8*KV_CHUNK}, v{R.vKa}
        v_subrev_u32 v{R.vTa}, {8*KV_CHUNK}, v{R.vTa}
        v_permlane32_swap_b32 v{t[2]}, v{t[3]}
        s_mov_b32 s{sFLAG}, 2
        v_max_f32 v{t[2]}, v{t[2]}, v{t[3]}
        ''')
        for j in range(16):
            a(f'v_sub_f32 v{R.NM+j}, 0, v{t[2]}')
        a(f's_branch {Lrun}')
    return redo


XCH = 110592


class OutRegs:
    def __init__(self):
        ra = RegAlloc(2, 250)
        self.t = [ra.get() for _ in range(6)]
        self.vM = [ra.get() for _ in range(3)]
        self.vT = [ra.get() for _ in range(3)]
        self.vAe, self.vAo = ra.get(), ra.get()
        self.Of = [ra.get(4, 4) for _ in range(9)]
        self.fA = [[ra.get(4, 4) for _ in range(6)] for _ in range(2)]
        self.acc = [ra.get(4, 4) for _ in range(6)]


def out_setup(a):
    a(f'''
    s_lshl_b32 s62, s{sXCD}, 2
    s_and_b32 s63, s{sIDX}, 3
    s_add_u32 s62, s62, s63
    s_lshr_b32 s63, s{sIDX}, 2
    ''')


def out_issue_wo(a, R):
    t = R.t
    for i in range(3):
        a(f'''
        v_add_u32 v{t[0]}, {64*i}, v1
        v_mul_u32_u24 v{t[1]}, 171, v{t[0]}
        v_lshrrev_b32 v{t[1]}, 11, v{t[1]}
        v_mul_u32_u24 v{t[2]}, 12, v{t[1]}
        v_sub_u32 v{t[0]}, v{t[0]}, v{t[2]}
        v_lshrrev_b32 v{t[2]}, 3, v{t[1]}
        v_lshlrev_b32 v{t[3]}, 1, v{t[2]}
        v_xor_b32 v{t[0]}, v{t[0]}, v{t[3]}
        v_lshlrev_b32 v{t[0]}, 4, v{t[0]}
        v_and_b32 v{t[3]}, 3, v{t[1]}
        v_bfe_u32 v{t[4]}, v{t[1]}, 2, 1
        v_lshl_add_u32 v{t[3]}, v{t[4]}, 3, v{t[3]}
        v_lshl_add_u32 v{t[3]}, v{t[2]}, 2, v{t[3]}
        v_mul_u32_u24 v{t[3]}, 1152, v{t[3]}
        v_add_u32 v{R.vM[i]}, v{t[3]}, v{t[0]}
        v_lshrrev_b32 v{t[3]}, 1, v{t[1]}
        v_mul_u32_u24 v{t[3]}, 18, v{t[3]}
        v_and_b32 v{t[4]}, 1, v{t[1]}
        v_add3_u32 v{t[3]}, v{t[3]}, v{t[4]}, 16
        v_mul_u32_u24 v{t[3]}, 1152, v{t[3]}
        v_add_u32 v{R.vT[i]}, v{t[3]}, v{t[0]}
        ''')
    a(f'''
    s_mul_i32 s64, s63, 192
    s_mul_i32 s65, s3, {18*1152}
    s_add_u32 s65, s65, s64
    s_mul_i32 s66, s3, 3072
    ''')
    for k in range(4):
        for i in range(3):
            a(f's_add_u32 m0, s66, {k*8*3072 + i*1024}')
            a('s_nop 0' if (i or not k) else f's_add_u32 s65, s65, {8*18*1152}')
            a(dma(SRD_WO, R.vM[i], 's65'))
    Ls = a.newlabel('notail')
    a(f'''
    s_cmp_gt_u32 s3, 3
    s_cbranch_scc1 {Ls}
    s_mul_i32 s65, s3, {8*18*1152}
    s_add_u32 s65, s65, s64
    ''')
    for i in range(3):
        a(f's_add_u32 m0, s66, {32*3072 + i*1024}\ns_nop 0')
        a(dma(SRD_WO, R.vT[i], 's65'))
    a.label(Ls)


def out_issue_o(a, R):
    t = R.t
    ws = f's[{SRD_WS}:{SRD_WS+3}]'
    a(f'''
    s_lshl_b32 s64, s62, 2
    s_and_b32 s65, s3, 3
    s_add_u32 s64, s64, s65
    s_mul_i32 s64, s64, 18432
    s_lshr_b32 s65, s3, 2
    s_mul_i32 s65, s65, 9216
    s_add_u32 s64, s64, s65
    s_add_u32 s64, s64, {WS_O}
    s_add_u32 s65, s64, 4096
    s_add_u32 s66, s64, 8192
    v_lshlrev_b32 v{t[5]}, 4, v1
    ''')
    for k in range(9):
        a(f'buffer_load_dwordx4 {v(R.Of[k],4)}, v{t[5]}, {ws}, s{64 + k//4} offen offset:{(k%4)*1024}')


def out_phase(a, R, ST):
    t = R.t
    a(f'''
    v_lshrrev_b32 v{t[0]}, 4, v1
    v_bfe_u32 v{t[1]}, v1, 2, 2
    v_lshl_add_u32 v{t[1]}, v{t[0]}, 3, v{t[1]}
    v_mul_u32_u24 v{t[1]}, 192, v{t[1]}
    v_and_b32 v{t[2]}, 3, v1
    v_lshl_add_u32 v{t[1]}, v{t[2]}, 3, v{t[1]}
    s_lshr_b32 s67, s3, 2
    s_mul_i32 s67, s67, 55296
    v_add_u32 v{t[1]}, s67, v{t[1]}
    v_and_b32 v{t[2]}, 1, v{t[0]}
    v_lshlrev_b32 v{t[2]}, 5, v{t[2]}
    v_add_u32 v{R.vAe}, v{t[1]}, v{t[2]}
    v_sub_u32 v{R.vAo}, v{t[1]}, v{t[2]}
    s_waitcnt vmcnt(9)
    s_barrier
    ''')
    stamp(a, 9, ST)

    def reads(k):
        L = []
        for f in range(6):
            for u in range(2):
                L.append(f'ds_read_b64_tr_b16 {v(R.fA[k&1][f]+2*u,2)}, v{R.vAo if f&1 else R.vAe} offset:{k*6144+u*768+f*32}')
        return L
    for x in reads(0):
        a(x)
    for k in range(9):
        mf = [f'v_mfma_f32_16x16x32_bf16 {v(R.acc[f],4)}, {v(R.fA[k&1][f],4)}, {v(R.Of[k],4)}, {v(R.acc[f],4) if k else 0}' for f in range(6)]
        a(f's_waitcnt vmcnt({8-k}) lgkmcnt(0)')
        for x in interleave(mf, reads(k+1) if k < 8 else []):
            a(x)
    stamp(a, 10, ST)
    out = f's[{SRD_OUT}:{SRD_OUT+3}]'
    L1, Lj = a.newlabel('kh1'), a.newlabel('khj')
    a(f'''
    s_mul_i32 s64, s3, 3072
    s_xor_b32 s65, s3, 4
    s_mul_i32 s65, s65, 3072
    v_add_u32 v{t[0]}, {XCH}, v{t[5]}
    v_add_u32 v{t[1]}, s65, v{t[0]}
    v_add_u32 v{t[0]}, s64, v{t[0]}
    s_lshl_b32 s64, s62, 2
    s_and_b32 s65, s3, 3
    s_add_u32 s64, s64, s65
    s_mul_i32 s64, s64, {16*2304}
    s_mul_i32 s65, s63, 192
    s_add_u32 s64, s64, s65
    s_add_u32 s64, s64, 1152
    v_and_b32 v{t[2]}, 15, v1
    v_mul_u32_u24 v{t[2]}, 2304, v{t[2]}
    v_lshrrev_b32 v{t[3]}, 4, v1
    v_lshl_add_u32 v{t[2]}, v{t[3]}, 3, v{t[2]}
    s_cmp_gt_u32 s3, 3
    s_cbranch_scc1 {L1}
    ''')
    for kh in range(2):
        if kh == 1:
            a.label(L1)
        keep = [3*kh + i for i in range(3)]
        send = [3*(1-kh) + i for i in range(3)]
        for i, f in enumerate(send):
            a(f'ds_write_b128 v{t[0]}, {v(R.acc[f],4)} offset:{i*1024}')
        a('s_waitcnt lgkmcnt(0)\ns_barrier')
        for i in range(3):
            a(f'ds_read_b128 {v(R.fA[0][i],4)}, v{t[1]} offset:{i*1024}')
        for i, f in enumerate(keep):
            a(f's_waitcnt lgkmcnt({2-i})')
            for j in range(4):
                a(f'v_add_f32 v{R.acc[f]+j}, v{R.acc[f]+j}, v{R.fA[0][i]+j}')
            a(f'v_cvt_pk_bf16_f32 v{R.fA[1][i]}, v{R.acc[f]}, v{R.acc[f]+1}')
            a(f'v_cvt_pk_bf16_f32 v{R.fA[1][i]+1}, v{R.acc[f]+2}, v{R.acc[f]+3}')
            a(f'buffer_store_dwordx2 {v(R.fA[1][i],2)}, v{t[2]}, {out}, s64 offen offset:{32*f}')
        if kh == 0:
            a(f's_branch {Lj}')
    a.label(Lj)
    stamp(a, 11, ST)
```

```python
import math
from asmlib import *
from layout import *
from phases import *

KROW = 272
KG_LDS = 59 * KROW
EXPS = list(range(8)) + [256, 258, 260, 262, 264] + [512, 516, 520, 768, 772, 776] + \
       [1024, 1032, 1280, 1288, 1536, 1544, 1792, 1800]
assert len(EXPS) == 27
WANT = [list(range(8)) + [1024, 1024, 1032, 1280, 1280, 1288, 1536, 1544],
        [256, 256, 258, 260, 260, 260, 262, 264] + [512, 516, 520, 768, 772, 776, 1792, 1800]]


def rowmap():
    m = [0]*32
    for h in range(2):
        for r in range(16):
            m[(r & 3) + 8*(r >> 2) + 4*h] = EXPS.index(WANT[h][r])
    return m


def cmul(d, x, y):
    return [f'v_pk_mul_f32 {v(d,2)}, {v(x,2)}, {v(y,2)} op_sel:[0,0] op_sel_hi:[1,0]',
            f'v_pk_fma_f32 {v(d,2)}, {v(x,2)}, {v(y,2)}, {v(d,2)} op_sel:[1,1,0] op_sel_hi:[0,1,1] neg_lo:[1,0,0]']


def kgen_setup(a, R):
    t = R.t
    rm = rowmap()
    for i in range(8):
        w = sum(rm[4*i+j] << (8*j) for j in range(4))
        a(f's_mov_b32 s{70+i}, 0x{w:08x}')
    a(f'''
    v_bfe_u32 v{t[0]}, v1, 2, 3
    v_mov_b32 v{t[1]}, s70
    ''')
    for i in range(1, 8):
        a(f'''
        v_cmp_eq_u32 s[78:79], {i}, v{t[0]}
        v_mov_b32 v{t[2]}, s{70+i}
        s_nop 0
        v_cndmask_b32 v{t[1]}, v{t[1]}, v{t[2]}, s[78:79]
        ''')
    a(f'''
    v_and_b32 v{t[0]}, 3, v1
    v_lshlrev_b32 v{t[0]}, 3, v{t[0]}
    v_bfe_u32 v{t[1]}, v{t[1]}, v{t[0]}, 8
    v_mul_u32_u24 v{t[1]}, {KROW}, v{t[1]}
    v_lshrrev_b32 v{t[2]}, 5, v1
    s_mul_i32 s66, s3, {KG_LDS}
    v_lshl_add_u32 v{t[0]}, v{t[2]}, 4, s66
    v_add_u32 v{R.vA}, v{t[0]}, v{t[1]}
    v_and_b32 v{t[1]}, 31, v1
    v_mul_u32_u24 v{t[3]}, {KROW}, v{t[1]}
    v_add_u32 v{R.vB}, v{t[0]}, v{t[3]}
    v_add_u32 v{R.vB}, {27*KROW}, v{R.vB}
    v_cmp_gt_u32 s[70:71], 32, v1
    v_and_b32 v{t[3]}, 1, v1
    v_cmp_eq_u32 s[72:73], 1, v{t[3]}
    v_mov_b32 v{t[3]}, 0x01000504
    v_mov_b32 v{t[4]}, 0x05040504
    v_cndmask_b32 v{R.sel3}, v{t[3]}, v{t[4]}, s[72:73]
    v_mov_b32 v{t[3]}, 0x03020302
    v_cndmask_b32 v{R.sel1}, v{t[3]}, v{R.sel3}, s[70:71]
    v_mov_b32 v{t[3]}, 0x01000302
    v_mov_b32 v{t[4]}, 0x01000100
    v_cndmask_b32 v{R.sel2}, v{t[3]}, v{t[4]}, s[70:71]
    v_lshlrev_b32 v{t[1]}, 4, v{t[1]}
    v_lshlrev_b32 v{t[2]}, 9, v{t[2]}
    v_sub_u32 v{t[1]}, {4096-16}, v{t[1]}
    v_sub_u32 v{R.vS0}, v{t[1]}, v{t[2]}
    v_lshlrev_b32 v{t[2]}, 1, v{t[2]}
    v_subrev_u32 v{t[1]}, 2560, v{t[1]}
    v_add_u32 v{R.vS1}, v{t[1]}, v{t[2]}
    v_lshlrev_b32 v{R.vP}, 2, v1
    v_cmp_eq_u32 s[74:75], 0, v1
    v_mov_b32 v{t[3]}, {OOB}
    v_mov_b32 v{t[4]}, 4096
    v_cndmask_b32 v{R.vZ}, v{t[3]}, v{t[4]}, s[74:75]
    v_subrev_u32 v{R.vS3}, 3072, v{R.vS0}
    ''')


class KgenRegs:
    def __init__(self):
        ra = RegAlloc(2, 250)
        self.t = [ra.get() for _ in range(6)]
        self.vA, self.vB, self.sel1, self.sel2, self.sel3 = [ra.get() for _ in range(5)]
        self.vS0, self.vS1, self.vS3, self.vP, self.vZ = [ra.get() for _ in range(5)]
        self.par = [ra.get() for _ in range(6)]
        self.ldt, self.dsk, self.dt = ra.get(), ra.get(), ra.get()
        self.z1, self.z8, self.z16, self.z256 = [ra.get(2, 2) for _ in range(4)]
        self.er, self.ar = ra.get(), ra.get()
        self.x = [ra.get(2, 2) for _ in range(4)]
        self.w = [ra.get(2, 2) for _ in range(9)]
        self.c = [ra.get(2, 2) for _ in range(4)]
        self.pk = [ra.get() for _ in range(4)]
        self.fA = [ra.get(4, 4) for _ in range(8)]
        self.fB = [ra.get(4, 4) for _ in range(8)]
        self.acc = ra.get(16, 4)
        self.o = ra.get(16, 4)
        self.ut = [ra.get() for _ in range(3)]
        self.ud = ra.get(36, 4)


def kgen_load(a, R, sCH):
    t = R.t
    a(f'''
    s_lshl_b32 s67, s{sCH}, 8
    v_add_u32 v{t[0]}, s67, v{R.vP}
    s_lshl_b32 s67, s{sCH}, 1
    v_mov_b32 v{t[1]}, s67
    ''')
    for i in range(6):
        a(f'global_load_dword v{R.par[i]}, v{t[0]}, s[{sPAR+2*i}:{sPAR+2*i+1}]')
    a(f'global_load_ushort v{R.ldt}, v{t[1]}, s[{sPAR+12}:{sPAR+13}]')
    a(f'global_load_ushort v{R.dsk}, v{t[1]}, s[{sPAR+14}:{sPAR+15}]')


def kgen_compute(a, R, sCH, nwait):
    t = R.t
    ws = f's[{SRD_WS}:{SRD_WS+3}]'
    l2hi = f32bits(LOG2E)
    import struct
    l2hi_f = struct.unpack('<f', struct.pack('<I', l2hi))[0]
    a(f'''
    s_waitcnt vmcnt({nwait})
    v_lshlrev_b32 v{R.ldt}, 16, v{R.ldt}
    v_lshlrev_b32 v{R.dsk}, 16, v{R.dsk}
    s_mov_b32 s68, 0x{l2hi:08x}
    v_mul_f32 v{t[0]}, s68, v{R.ldt}
    v_fma_f32 v{t[1]}, v{R.ldt}, s68, -v{t[0]}
    v_exp_f32 v{t[0]}, v{t[0]}
    v_fmac_f32 v{t[1]}, {hexf(LOG2E - l2hi_f)}, v{R.ldt}
    v_mul_f32 v{t[1]}, {hexf(math.log(2.0))}, v{t[1]}
    v_fmac_f32 v{t[0]}, v{t[0]}, v{t[1]}
    v_cvt_pk_bf16_f32 v{t[0]}, v{t[0]}, v{t[0]}
    v_and_b32 v{R.dt}, 0xffff0000, v{t[0]}
    s_mov_b32 m0, s66
    s_mov_b32 s69, 0
    ''')
    Lp = a.newlabel('kpass')
    a.label(Lp)
    x = R.x
    a(f'''
    v_lshlrev_b32 v{R.er}, 16, v{R.par[0]}
    v_lshlrev_b32 v{R.ar}, 16, v{R.par[1]}
    v_lshlrev_b32 v{x[0]}, 16, v{R.par[2]}
    v_lshlrev_b32 v{x[0]+1}, 16, v{R.par[3]}
    v_lshlrev_b32 v{x[1]}, 16, v{R.par[4]}
    v_lshlrev_b32 v{x[1]+1}, 16, v{R.par[5]}
    v_mul_f32 v{R.er}, v{R.dt}, v{R.er}
    v_mul_f32 v{R.ar}, v{R.dt}, v{R.ar}
    v_mul_f32 v{x[0]}, v{R.dt}, v{x[0]}
    v_mul_f32 v{x[0]+1}, v{R.dt}, v{x[0]+1}
    v_mul_f32 v{R.er}, s68, v{R.er}
    v_mul_f32 v{R.ar}, 0.15915494, v{R.ar}
    ''')
    for y in cmul(R.w[0], x[0], x[1]):
        a(y)
    for z, e in ((R.z1, 1.0), (R.z8, 8.0), (R.z256, 256.0)):
        if e == 1.0:
            a(f'v_exp_f32 v{t[0]}, v{R.er}\nv_fract_f32 v{t[1]}, v{R.ar}')
        else:
            a(f'''
            v_mul_f32 v{t[0]}, {hexf(e)}, v{R.er}
            v_mul_f32 v{t[1]}, {hexf(e)}, v{R.ar}
            v_exp_f32 v{t[0]}, v{t[0]}
            v_fract_f32 v{t[1]}, v{t[1]}
            ''')
        a(f'''
        v_cos_f32 v{z}, v{t[1]}
        v_sin_f32 v{z+1}, v{t[1]}
        v_mul_f32 v{z}, v{t[0]}, v{z}
        v_mul_f32 v{z+1}, v{t[0]}, v{z+1}
        ''')
    npk = [0]

    def putA(reg, e):
        p = R.pk[npk[0] & 3]; npk[0] += 1
        return [f'v_cvt_pk_bf16_f32 v{p}, v{reg}, -v{reg+1}', f'ds_write_addtid_b32 v{p} offset:{EXPS.index(e)*KROW}']

    def putB(reg, i):
        p = R.pk[npk[0] & 3]; npk[0] += 1
        return [f'v_cvt_pk_bf16_f32 v{p}, v{reg}, v{reg+1}', f'ds_write_addtid_b32 v{p} offset:{(27+i)*KROW}']
    w = R.w
    sa = [([], (w[0], 'A', 0))]
    for j in range(1, 9):
        sa.append((cmul(w[j], w[j-1], R.z1), (w[j], 'A', j) if j < 8 else None))
    cur = {0: w[0], 2: w[2], 4: w[4], 6: w[6], 8: w[8]}
    spare = [w[1], w[3], w[5], w[7], x[0], x[1]]
    for base, js in ((256, (0, 2, 4, 6, 8)), (512, (0, 4, 8)), (768, (0, 4, 8)), (1024, (0, 8)), (1280, (0, 8)), (1536, (0, 8)), (1792, (0, 8))):
        for j in js:
            d = spare.pop(0)
            sa.append((cmul(d, cur[j], R.z256), (d, 'A', base+j)))
            spare.append(cur[j]); cur[j] = d
    c = R.c
    sb0 = [(cmul(R.z16, R.z8, R.z8), (R.z16, 'B', 2))]
    prev = R.z16
    for i in range(4, 32, 2):
        d = c[(i >> 1) & 1]
        sb0.append((cmul(d, prev, R.z16), (d, 'B', i))); prev = d
    sb1 = [([], (R.z8, 'B', 1))]
    prev = R.z8
    for i in range(3, 32, 2):
        d = c[2 + ((i >> 1) & 1)]
        sb1.append((cmul(d, prev, R.z16), (d, 'B', i))); prev = d
    a(f'v_mov_b32 v{t[0]}, 0x00003f80\nds_write_addtid_b32 v{t[0]} offset:{27*KROW}')
    ia = ib0 = ib1 = 0
    pend = []
    while ia < len(sa) or ib0 < len(sb0) or ib1 < len(sb1):
        grp = []
        if ib0 < len(sb0): grp.append(sb0[ib0]); ib0 += 1
        if ia < len(sa): grp.append(sa[ia]); ia += 1
        if ib1 < len(sb1) and ib1 <= ib0 - 1 + (1 if ib0 >= len(sb0) else 0): grp.append(sb1[ib1]); ib1 += 1
        if ia < len(sa) and ia > 9: grp.append(sa[ia]); ia += 1
        for g in grp:
            if g[0]: a(g[0][0])
        for y in pend: a(y)
        pend = []
        for g in grp:
            if g[0]: a(g[0][1])
        st = []
        for g in grp:
            if g[1]:
                reg, kind, e = g[1]
                st.append(putA(reg, e) if kind == 'A' else putB(reg, e))
        for y in st: a(y[0])
        pend = [y[1] for y in st]
    for y in pend: a(y)
    for k in range(8):
        a(f'ds_read_b128 {v(R.fA[k],4)}, v{R.vA} offset:{32*k}')
        a(f'ds_read_b128 {v(R.fB[k],4)}, v{R.vB} offset:{32*k}')
    for i in range(6):
        a(f'v_lshrrev_b32 v{R.par[i]}, 16, v{R.par[i]}')
    L1, Lj = a.newlabel('kacc'), a.newlabel('kj')
    a(f's_cmp_lg_u32 s69, 0\ns_cbranch_scc1 {L1}')
    for j in range(16):
        a(f'v_mov_b32 v{R.acc+j}, 0')
    a.label(L1)
    for k in range(8):
        a(f's_waitcnt lgkmcnt({min(14-2*k, 14)})')
        if k == 0: a('s_nop 0')
        a(f'v_mfma_f32_32x32x16_bf16 {v(R.acc,16)}, {v(R.fA[k],4)}, {v(R.fB[k],4)}, {v(R.acc,16)}')
    a(f'''
    s_add_u32 s69, s69, 1
    s_cmp_lt_u32 s69, 2
    s_cbranch_scc1 {Lp}
    s_mul_i32 s67, s{sCH}, {KG_STRIDE}
    s_add_u32 s67, s67, {WS_KG}
    v_cndmask_b32 v{R.dsk}, 0, v{R.dsk}, s[74:75]
    s_nop 7
    ''')
    g = R.acc; o = R.o
    a(f'v_add_f32 v{g}, v{g}, v{R.dsk}')
    for j in range(4):
        a(f'v_cvt_pk_bf16_f32 v{o+j}, v{g+7-2*j}, v{g+6-2*j}')
    a(f'buffer_store_dwordx4 {v(o,4)}, v{R.vS0}, {ws}, s67 offen')
    for b, r in enumerate((8, 11)):
        d = o + 4 + 4*b
        a(f'''
        v_cvt_pk_bf16_f32 v{t[0]}, v{g+r}, v{g+r+1}
        v_cvt_pk_bf16_f32 v{d}, v{g+r+2}, v{g+r+2}
        v_cvt_pk_bf16_f32 v{d+3}, v{g+r}, v{g+r}
        v_perm_b32 v{d+1}, v{d}, v{t[0]}, v{R.sel1}
        v_perm_b32 v{d+2}, v{d}, v{t[0]}, v{R.sel2}
        buffer_store_dwordx4 {v(d,4)}, v{R.vS1}, {ws}, s67 offen offset:{512*(1-b)}
        ''')
    d = o + 12
    a(f'''
    v_cvt_pk_bf16_f32 v{d}, v{g+15}, v{g+15}
    v_cvt_pk_bf16_f32 v{d+2}, v{g+14}, v{g+14}
    v_cvt_pk_bf16_f32 v{d+3}, v{g+14}, v{g+14}
    v_perm_b32 v{d+1}, v{d}, v{d+2}, v{R.sel3}
    v_mov_b32 v{g+4}, 0
    v_mov_b32 v{g+5}, 0
    v_mov_b32 v{g+6}, 0
    v_mov_b32 v{g+7}, 0
    buffer_store_dwordx4 {v(d,4)}, v{R.vS3}, {ws}, s67 offen
    buffer_store_dwordx4 {v(g+4,4)}, v{R.vZ}, {ws}, s67 offen
    ''')


def ut_issue(a, t, base):
    a(f'''
    s_lshr_b32 s64, s62, 1
    s_lshl_b32 s64, s64, 6
    s_mul_i32 s64, s64, 1152
    s_and_b32 s65, s62, 1
    s_mul_i32 s65, s65, 576
    s_add_u32 s64, s64, s65
    s_sub_u32 s64, s64, 1152
    s_lshl_b32 s65, s3, 10
    ''')
    for i in range(5):
        a(f'''
        v_add_u32 v{t[0]}, {512*i}, v0
        v_mul_u32_u24 v{t[1]}, 1821, v{t[0]}
        v_lshrrev_b32 v{t[1]}, 16, v{t[1]}
        v_mul_u32_u24 v{t[2]}, {1152-576}, v{t[1]}
        v_lshl_add_u32 v{t[2]}, v{t[0]}, 4, v{t[2]}
        v_add_u32 v{t[2]}, s64, v{t[2]}
        s_add_u32 m0, s65, {base + 8192*i}
        ''')
        if i == 4:
            a(f'''
            v_cmp_ge_u32 s[78:79], 64, v{t[1]}
            v_mov_b32 v{t[0]}, {OOB}
            s_nop 0
            v_cndmask_b32 v{t[2]}, v{t[0]}, v{t[2]}, s[78:79]
            ''')
        else:
            a('s_nop 0')
        a(dma(SRD_U, t[2], '0'))


def ut_store(a, t, d, base):
    ws = f's[{SRD_WS}:{SRD_WS+3}]'
    a(f'''
    v_lshrrev_b32 v{t[0]}, 5, v1
    s_lshr_b32 s64, s3, 1
    s_lshl_b32 s64, s64, 1
    v_add_u32 v{t[0]}, s64, v{t[0]}
    v_bfe_u32 v{t[1]}, v1, 2, 2
    v_lshl_add_u32 v{t[1]}, v{t[0]}, 3, v{t[1]}
    s_and_b32 s65, s3, 1
    v_add_u32 v{t[1]}, s65, v{t[1]}
    v_mul_u32_u24 v{t[1]}, 576, v{t[1]}
    v_bfe_u32 v{t[2]}, v1, 4, 1
    v_lshl_add_u32 v{t[1]}, v{t[2]}, 5, v{t[1]}
    v_and_b32 v{t[2]}, 3, v1
    v_lshl_add_u32 v{t[1]}, v{t[2]}, 3, v{t[1]}
    v_add_u32 v{t[1]}, {base}, v{t[1]}
    v_and_b32 v{t[2]}, 31, v1
    v_lshlrev_b32 v{t[2]}, 13, v{t[2]}
    v_lshl_add_u32 v{t[2]}, v{t[0]}, 4, v{t[2]}
    s_lshl_b32 s65, s65, 12
    s_lshr_b32 s64, s62, 1
    s_lshl_b32 s64, s64, 7
    s_add_u32 s65, s65, s64
    s_and_b32 s64, s62, 1
    s_mul_i32 s64, s64, {288*8192}
    s_add_u32 s65, s65, s64
    s_add_u32 s65, s65, {WS_UT}
    ''')

    for cg in range(9):
        r = d + 4*cg
        a(f'ds_read_b64_tr_b16 {v(r,2)}, v{t[1]} offset:{64*cg}')
        a(f'ds_read_b64_tr_b16 {v(r+2,2)}, v{t[1]} offset:{64*cg + 4*576}')
    a('s_waitcnt lgkmcnt(0)')


def ut_stores(a, t, d):
    ws = f's[{SRD_WS}:{SRD_WS+3}]'
    L = []
    for cg in range(9):
        L.append(f'buffer_store_dwordx4 {v(d+4*cg,4)}, v{t[2]}, {ws}, s65 offen' + (f'\ns_add_u32 s65, s65, {32*8192}' if cg < 8 else ''))
    return L


CV_SLOT = 17920
CV_U = 8448
CV_XCH = 3 * CV_SLOT


class ConvRegs:
    def __init__(self):
        ra = RegAlloc(2, 250)
        self.t = [ra.get() for _ in range(6)]
        self.vA, self.vB = ra.get(), ra.get()
        self.z = ra.get(4, 4)
        self.A = [[ra.get(4, 4) for _ in range(8)] for _ in range(2)]
        self.B = [[ra.get(4, 4) for _ in range(8)] for _ in range(2)]
        self.acc = [ra.get(4, 4) for _ in range(8)]


def conv_setup(a):
    a(f'''
    s_mul_i32 s64, s{sXCD}, 24
    s_add_u32 s64, s64, s{sIDX}
    s_lshl_b32 s64, s64, 1
    s_lshl_b32 s65, s{sXCD}, 3
    s_add_u32 s65, s65, s{sIDX}
    s_mul_i32 s65, s65, 3
    s_add_u32 s65, s65, {384 - 72}
    s_cmp_lt_u32 s{sIDX}, 24
    s_cselect_b32 s64, s64, s65
    s_cselect_b32 s65, 4, 6
    s_lshr_b32 s66, s3, 1
    s_add_u32 s64, s64, s66
    ''')


def conv_issue(a, R, base):
    t = R.t
    a(f'''
    s_mul_i32 s66, s66, {CV_SLOT}
    s_add_u32 s66, s66, {base}
    s_and_b32 s67, s3, 1
    s_mul_i32 s68, s67, 4224
    s_add_u32 s68, s68, s66
    s_mul_i32 s69, s64, {KG_STRIDE}
    s_add_u32 s69, s69, {WS_KG + 4}
    s_lshl_b32 s70, s67, 2
    s_sub_u32 s69, s69, s70
    v_lshlrev_b32 v{t[0]}, 4, v1
    s_mov_b32 m0, s68
    s_mul_i32 s70, s67, 4640
    ''')
    for i in range(4):
        a(dma(SRD_WS, t[0], 's69') .replace(' offen lds', f' offen offset:{1024*i} lds'))
    a(f'''
    s_add_u32 s70, s70, s66
    s_add_u32 s70, s70, {CV_U}
    s_add_u32 m0, s70, 512
    s_lshl_b32 s69, s64, 13
    s_lshl_b32 s71, s67, 12
    s_add_u32 s69, s69, s71
    s_add_u32 s69, s69, {WS_UT}
    ''')
    for i in range(4):
        a(dma(SRD_WS, t[0], 's69') .replace(' offen lds', f' offen offset:{1024*i} lds'))
    a(f'''
    v_mov_b32 v{R.z}, 0
    v_mov_b32 v{R.z+1}, 0
    v_lshl_add_u32 v{t[1]}, v1, 3, s70
    v_and_b32 v{t[2]}, 7, v1
    v_lshl_add_u32 v{t[2]}, v{t[2]}, 3, s68
    ds_write_b64 v{t[1]}, {v(R.z,2)}
    ds_write_b64 v{t[2]}, {v(R.z,2)} offset:4096
    ''')
    a(f'''
    v_and_b32 v{t[1]}, 15, v1
    v_lshrrev_b32 v{t[2]}, 4, v1
    v_and_b32 v{t[3]}, 1, v1
    v_lshrrev_b32 v{t[1]}, 1, v{t[1]}
    s_lshl_b32 s71, s67, 8
    s_sub_u32 s71, s66, s71
    v_mul_u32_u24 v{t[4]}, 4224, v{t[3]}
    v_lshl_add_u32 v{t[4]}, v{t[2]}, 4, v{t[4]}
    v_lshlrev_b32 v{t[5]}, 3, v{t[1]}
    v_sub_u32 v{t[4]}, v{t[4]}, v{t[5]}
    v_add_u32 v{t[4]}, {2*2044 - 64*59}, v{t[4]}
    v_add_u32 v{R.vA}, s71, v{t[4]}
    v_mul_u32_u24 v{t[4]}, 4640, v{t[3]}
    v_lshl_add_u32 v{t[4]}, v{t[2]}, 4, v{t[4]}
    v_lshl_add_u32 v{t[4]}, v{t[1]}, 6, v{t[4]}
    v_add_u32 v{t[4]}, {CV_U + 512 - 192}, v{t[4]}
    v_add_u32 v{R.vB}, s71, v{t[4]}
    ''')


def conv_compute(a, R, base):
    t = R.t

    def reads(r):
        b = r & 1
        L = []
        for p in range(8):
            L.append(f'ds_read_b128 {v(R.B[b][7-p],4)}, v{R.vB} offset:{64*(8*(7-p)+3-r)}')
            o = 64*(59-8*p-r)
            L.append(f'ds_read_b64 {v(R.A[b][p],2)}, v{R.vA} offset:{o}')
            L.append(f'ds_read_b64 {v(R.A[b][p]+2,2)}, v{R.vA} offset:{o+8}')
        return L
    for x in reads(0):
        a(x)
    for r in range(4):
        b = r & 1
        mf = []
        for p in range(8):
            for c in range(7, p-1, -1):
                C = '0' if (r == 0 and p == 0) else v(R.acc[c], 4)
                mf.append(f'v_mfma_f32_16x16x32_bf16 {v(R.acc[c],4)}, {v(R.A[b][p],4)}, {v(R.B[b][c-p],4)}, {C}')
        a('s_waitcnt lgkmcnt(0)')
        nx = reads(r+1) if r < 3 else []
        for x in interleave(mf[:26], nx) + mf[26:]:
            a(x)
    a(f'''
    s_lshl_b32 s68, s3, 12
    s_xor_b32 s69, s68, 4096
    v_add_u32 v{t[0]}, {base + CV_XCH}, v{t[0]}
    v_add_u32 v{t[1]}, s69, v{t[0]}
    v_add_u32 v{t[0]}, s68, v{t[0]}
    v_and_b32 v{t[2]}, 15, v1
    v_lshrrev_b32 v{t[3]}, 4, v1
    v_lshlrev_b32 v{t[2]}, 5, v{t[2]}
    v_lshl_add_u32 v{t[2]}, v{t[3]}, 3, v{t[2]}
    s_lshl_b32 s68, s64, 12
    s_add_u32 s68, s68, {WS_YT}
    ''')


def conv_send(a, R, rh):
    for i in range(4):
        a(f'ds_write_b128 v{R.t[0]}, {v(R.acc[2*i+1-rh],4)} offset:{1024*i}')
    a('s_waitcnt lgkmcnt(0)')


def conv_finish(a, R, rh):
    ws = f's[{SRD_WS}:{SRD_WS+3}]'
    t = R.t
    for i in range(4):
        a(f'ds_read_b128 {v(R.A[0][i],4)}, v{t[1]} offset:{1024*i}')
    for i in range(4):
        c = 2*i + rh
        a(f's_waitcnt lgkmcnt({3-i})')
        for j in range(4):
            a(f'v_add_f32 v{R.acc[c]+j}, v{R.acc[c]+j}, v{R.A[0][i]+j}')
        a(f'v_cvt_pk_bf16_f32 v{R.B[0][i]}, v{R.acc[c]}, v{R.acc[c]+1}')
        a(f'v_cvt_pk_bf16_f32 v{R.B[0][i]+1}, v{R.acc[c]+2}, v{R.acc[c]+3}')
        a(f'buffer_store_dwordx2 {v(R.B[0][i],2)}, v{t[2]}, {ws}, s68 offen offset:{512*c}')


def yt_phase(a, ST):
    t = [2, 3, 4, 5]
    d = 8
    out = f's[{SRD_OUT}:{SRD_OUT+3}]'
    a(f'''
    v_lshrrev_b32 v{t[0]}, 3, v1
    v_and_b32 v{t[1]}, 7, v1
    v_bfe_u32 v{t[2]}, v1, 4, 1
    v_lshlrev_b32 v{t[2]}, 2, v{t[2]}
    v_xor_b32 v{t[1]}, v{t[1]}, v{t[2]}
    v_lshlrev_b32 v{t[0]}, 12, v{t[0]}
    v_lshl_add_u32 v{t[0]}, v{t[1]}, 4, v{t[0]}
    s_and_b32 s64, s62, 1
    s_mul_i32 s64, s64, 36
    s_add_u32 s64, s64, s3
    s_lshl_b32 s64, s64, 15
    s_lshr_b32 s65, s62, 1
    s_lshl_b32 s65, s65, 7
    s_add_u32 s64, s64, s65
    s_add_u32 s64, s64, {WS_YT}
    s_lshl_b32 s65, s3, 10
    s_mov_b32 m0, s65
    s_nop 0
    ''')
    Ls = a.newlabel('ytskip')
    for i in range(5):
        if i == 4:
            a(f's_cmp_gt_u32 s3, 3\ns_cbranch_scc1 {Ls}')
        a(dma(SRD_WS, t[0], 's64'))
        if i < 4:
            a(f's_add_u32 m0, s65, {8192*(i+1)}\ns_add_u32 s64, s64, {8*32768}')
    a.label(Ls)
    a(f'''
    v_bfe_u32 v{t[1]}, v1, 2, 2
    v_lshrrev_b32 v{t[2]}, 4, v1
    v_bfe_u32 v{t[3]}, v1, 3, 1
    v_lshlrev_b32 v{t[3]}, 1, v{t[3]}
    v_xor_b32 v{t[3]}, v{t[3]}, v{t[2]}
    v_lshlrev_b32 v{t[1]}, 7, v{t[1]}
    v_lshl_add_u32 v{t[1]}, v{t[3]}, 5, v{t[1]}
    v_and_b32 v{t[3]}, 3, v1
    v_lshl_add_u32 v{t[1]}, v{t[3]}, 3, v{t[1]}
    v_add_u32 v{t[1]}, s65, v{t[1]}
    v_lshlrev_b32 v{t[3]}, 1, v{t[3]}
    v_bfe_u32 v{t[0]}, v1, 2, 2
    v_lshl_add_u32 v{t[3]}, v{t[0]}, 3, v{t[3]}
    v_bfe_u32 v{t[0]}, v1, 4, 1
    v_add_u32 v{t[3]}, v{t[3]}, v{t[0]}
    v_and_b32 v{t[0]}, 32, v1
    v_add_u32 v{t[3]}, v{t[3]}, v{t[0]}
    v_mul_u32_u24 v{t[3]}, 2304, v{t[3]}
    s_lshr_b32 s64, s62, 1
    s_mul_i32 s64, s64, {64*2304}
    s_and_b32 s66, s62, 1
    s_mul_i32 s66, s66, 576
    s_add_u32 s64, s64, s66
    s_lshl_b32 s66, s3, 4
    s_add_u32 s64, s64, s66
    s_waitcnt vmcnt(0)
    ''')
    Le = a.newlabel('ytend')
    for i in range(5):
        if i == 4:
            a(f's_cmp_gt_u32 s3, 3\ns_cbranch_scc1 {Le}')
        r = d + 4*i
        a(f'ds_read_b64_tr_b16 {v(r,2)}, v{t[1]} offset:{8192*i}')
        a(f'ds_read_b64_tr_b16 {v(r+2,2)}, v{t[1]} offset:{8192*i + 512}')
        a('s_waitcnt lgkmcnt(0)')
        a(f'buffer_store_dwordx4 {v(r,4)}, v{t[3]}, {out}, s64 offen offset:{128*i}')
    a.label(Le)
```

```python
import sys
from asmlib import *
from layout import *
from phases import *
from ssm import *

NAME = 'concat_heads__ssm_conv_s4__mha_block__prompt'
LDS = 163840

def kernel_head(a, name):
    a(f'.p2align 8\n.globl {name}\n.type {name},@function')
    a.label(name)

def descriptor(name, vgpr=256):
    return f'''.amdhsa_kernel {name}
  .amdhsa_next_free_vgpr {vgpr}
  .amdhsa_next_free_sgpr 102
  .amdhsa_accum_offset {vgpr}
  .amdhsa_group_segment_fixed_size 0
  .amdhsa_kernarg_size 120
  .amdhsa_user_sgpr_count 2
  .amdhsa_user_sgpr_kernarg_segment_ptr 1
  .amdhsa_system_sgpr_workgroup_id_x 1
.end_amdhsa_kernel
'''

def p1_body(a, end, ST):
    Lssm, Lv, Lq1, Lv1 = [a.newlabel(x) for x in ('ssm', 'v', 'q1', 'v1')]
    a(f's_cmp_ge_u32 s{sIDX}, 24\ns_cbranch_scc1 {Lssm}')
    gemm_setup(a)
    a(f's_cmp_ge_u32 s63, 8\ns_cbranch_scc1 {Lv}')
    a(f's_cmp_ge_u32 s3, 4\ns_cbranch_scc1 {Lq1}')
    gemm_phase(a, 'qk', 0, ST); a(f's_branch {end}')
    a.label(Lq1)
    gemm_phase(a, 'qk', 1, ST); a(f's_branch {end}')
    a.label(Lv)
    a(f's_cmp_ge_u32 s3, 4\ns_cbranch_scc1 {Lv1}')
    gemm_phase(a, 'v', 0, ST); a(f's_branch {end}')
    a.label(Lv1)
    gemm_phase(a, 'v', 1, ST); a(f's_branch {end}')
    a.label(Lssm)
    R = KgenRegs()
    a(f'''
    s_lshl_b32 s62, s{sXCD}, 3
    s_add_u32 s62, s62, s{sIDX}
    s_sub_u32 s62, s62, 24
    s_mul_i32 s63, s62, 9
    s_add_u32 s63, s63, s3
    v_lshlrev_b32 v{R.vP}, 2, v1
    ''')
    ut_issue(a, R.ut, 0)
    kgen_load(a, R, 63)
    kgen_setup(a, R)
    a('s_waitcnt vmcnt(8)\ns_barrier')
    stamp(a, 1, ST)
    ut_store(a, R.ut, R.ud, 0)
    a('s_barrier')
    a('s_waitcnt vmcnt(0)')
    for x in ut_stores(a, R.ut, R.ud): a(x)
    Lk = a.newlabel('kch')
    a('s_mov_b32 s80, 0')
    a.label(Lk)
    kgen_compute(a, R, 63, 63)
    stamp(a, 2, ST)
    a(f'''
    s_add_u32 s81, s3, s80
    s_cmp_lg_u32 s81, 0
    s_cbranch_scc1 {end}
    s_mov_b32 s80, 1
    s_add_u32 s63, s63, 8
    ''')
    kgen_load(a, R, 63)
    a(f's_waitcnt vmcnt(0)\ns_branch {Lk}')

def conv_body(a, ST):
    C = ConvRegs()
    Lidle, L1, Lj, Lend = [a.newlabel(x) for x in ('cidle', 'c1', 'cj', 'cend')]
    conv_setup(a)
    a(f's_cmp_ge_u32 s3, s65\ns_cbranch_scc1 {Lidle}')
    conv_issue(a, C, 0)
    a('s_waitcnt vmcnt(0) lgkmcnt(0)\ns_barrier')
    stamp(a, 12, ST)
    conv_compute(a, C, 0)
    stamp(a, 13, ST)
    a(f's_cmp_eq_u32 s67, 1\ns_cbranch_scc1 {L1}')
    conv_send(a, C, 0); a('s_barrier'); conv_finish(a, C, 0); a(f's_branch {Lend}')
    a.label(L1)
    conv_send(a, C, 1); a('s_barrier'); conv_finish(a, C, 1); a(f's_branch {Lend}')
    a.label(Lidle)
    a('s_barrier\ns_barrier')
    a.label(Lend)
    a('s_barrier')
    stamp(a, 14, ST)

def build(ST=False):
    a = Asm()
    ref = open('cdna_kernels/%s.s.ref' % NAME).read().split('\n')
    head = [l for l in ref if l.startswith(';') and '@launch' not in l and 'Override launch' not in l and 'grid=ceil' not in l]
    a.lines += head
    for k in ('p1_kernel', 'p2_kernel', 'p3_kernel'):
        a.lines.append(f'; @launch kernel={k} grid=(256,1,1) block=(512,1,1) lds={LDS}')
    a('.amdgcn_target "amdgcn-amd-amdhsa--gfx950"\n.text')
    kernel_head(a, 'p1_kernel')
    prologue(a, 'L_end1')
    stamp(a, 0, ST)
    p1_body(a, 'L_end1', ST)
    a.label('L_end1'); a('s_endpgm')
    kernel_head(a, 'p2_kernel')
    prologue(a, 'L_end2')
    stamp(a, 4, ST)
    conv_body(a, ST)
    R = AttnRegs()
    attn_setup(a)
    attn_issue_loads(a, R)
    redo = attn_phase(a, R, ST)
    a.label('L_end2'); a('s_endpgm')
    redo()
    kernel_head(a, 'p3_kernel')
    prologue(a, 'L_end3')
    stamp(a, 8, ST)
    Ly = a.newlabel('yt')
    a(f's_cmp_ge_u32 s{sIDX}, 24\ns_cbranch_scc1 {Ly}')
    O = OutRegs()
    out_setup(a)
    out_issue_wo(a, O)
    out_issue_o(a, O)
    out_phase(a, O, ST)
    a('s_branch L_end3')
    a.label(Ly)
    a(f'''
    s_lshl_b32 s62, s{sXCD}, 3
    s_add_u32 s62, s62, s{sIDX}
    s_sub_u32 s62, s62, 24
    ''')
    yt_phase(a, ST)
    stamp(a, 11, ST)
    a.label('L_end3'); a('s_endpgm')
    a('.section .rodata,"a"')
    txt = a.text()
    for k in ('p1_kernel', 'p2_kernel', 'p3_kernel'):
        txt += '.p2align 6\n' + descriptor(k)
    return txt

if __name__ == '__main__':
    st = 3 if '--dbg' in sys.argv else 2 if '--rt' in sys.argv else (1 if '--stamp' in sys.argv else 0)
    out = [x for x in sys.argv[1:] if not x.startswith('--')]
    path = out[0] if out else 'cdna_kernels/%s.s' % NAME
    open(path, 'w').write(build(st))
    print('wrote', path)
```

```python
import math
from asmlib import *
from layout import *

sWG, sWAVE = 2, 3
SRD_X, SRD_W, SRD_WS, SRD_OUT, SRD_U, SRD_WO = 8, 12, 16, 20, 24, 28
sPAR = 32
sDBG = 48
sWSP = 50
sXCD, sIDX = 60, 61
vTID, vLANE = 0, 1
OOB = 0x7ffffff0

LOG2E = 1.4426950408889634


def prologue(a, endlab):
    a(f'''
    s_cmp_ge_u32 s2, 256
    s_cbranch_scc1 {endlab}
    s_load_dwordx2 s[4:5], s[0:1], 0
    s_load_dwordx16 s[32:47], s[0:1], 8
    s_load_dwordx8 s[52:59], s[0:1], 72
    s_load_dwordx4 s[48:51], s[0:1], 104
    v_lshrrev_b32 v2, 6, v0
    v_and_b32 v1, 63, v0
    s_and_b32 s{sXCD}, s2, 7
    v_readfirstlane_b32 s3, v2
    s_lshr_b32 s{sIDX}, s2, 3
    s_mov_b32 s{SRD_X+2}, {X_BYTES}
    s_mov_b32 s{SRD_X+3}, 0x00020000
    s_mov_b32 s{SRD_W+2}, {W_BYTES}
    s_mov_b32 s{SRD_W+3}, 0x00020000
    s_mov_b32 s{SRD_WS+2}, {WS_SIZE}
    s_mov_b32 s{SRD_WS+3}, 0x00020000
    s_mov_b32 s{SRD_OUT+2}, {OUT_BYTES}
    s_mov_b32 s{SRD_OUT+3}, 0x00020000
    s_mov_b32 s{SRD_U+2}, {X_BYTES}
    s_mov_b32 s{SRD_U+3}, 0x00020000
    s_mov_b32 s{SRD_WO+2}, {WO_BYTES}
    s_mov_b32 s{SRD_WO+3}, 0x00020000
    s_waitcnt lgkmcnt(0)
    s_mov_b32 s{SRD_U}, s4
    s_mov_b32 s{SRD_U+1}, s5
    s_mov_b32 s{SRD_X}, s52
    s_mov_b32 s{SRD_X+1}, s53
    s_mov_b32 s{SRD_W}, s54
    s_mov_b32 s{SRD_W+1}, s55
    s_mov_b32 s{SRD_WO}, s56
    s_mov_b32 s{SRD_WO+1}, s57
    s_mov_b32 s{SRD_OUT}, s58
    s_mov_b32 s{SRD_OUT+1}, s59
    s_mov_b32 s{SRD_WS}, s50
    s_mov_b32 s{SRD_WS+1}, s51
    ''')


def stamp(a, slot, on):
    if not on:
        return
    if on == 3:
        a(f'''
        s_memrealtime s[96:97]
        v_mov_b32 v254, {slot*4}
        s_waitcnt lgkmcnt(0)
        s_and_b32 s96, s96, 0xffffff
        {'s_sub_u32 s96, 0x1000000, s96' if slot in (0, 4, 8) else ''}
        v_mov_b32 v252, s96
        s_mov_b64 s[96:97], exec
        s_mov_b64 exec, 1
        global_atomic_umax v254, v252, s[{sDBG}:{sDBG+1}]
        s_mov_b64 exec, s[96:97]
        ''')
        return
    a(f'''
    {'s_memrealtime' if on == 2 else 's_memtime'} s[96:97]
    s_lshl_b32 s98, s2, 3
    s_add_u32 s98, s98, s3
    s_lshl_b32 s98, s98, 7
    s_add_u32 s98, s98, {WS_STAMP + slot*8}
    v_mov_b32 v254, 0
    s_waitcnt lgkmcnt(0)
    v_mov_b32 v252, s96
    v_mov_b32 v253, s97
    s_mov_b64 s[96:97], exec
    s_mov_b64 exec, 1
    buffer_store_dwordx2 v[252:253], v254, s[{SRD_WS}:{SRD_WS+3}], s98 offen
    s_mov_b64 exec, s[96:97]
    ''')


def dma(srd, vaddr, soff):
    return f'buffer_load_dwordx4 v{vaddr}, s[{srd}:{srd+3}], {soff} offen lds'


def gemm_setup(a):
    a(f'''
    s_and_b32 s62, s{sXCD}, 3
    s_lshl_b32 s62, s62, 2
    s_and_b32 s64, s{sIDX}, 3
    s_add_u32 s62, s62, s64
    s_lshr_b32 s63, s{sXCD}, 2
    s_mul_i32 s63, s63, 6
    s_lshr_b32 s64, s{sIDX}, 2
    s_add_u32 s63, s63, s64
    ''')


def gemm_phase(a, role, fh, ST):
    ra = RegAlloc(2, 250)
    vX0, vX1, vW0, vW1, vWt = [ra.get() for _ in range(5)]
    vXa = [ra.get() for _ in range(4)]
    vWa, vTa = ra.get(), ra.get()
    t0, t1, t2, t3 = [ra.get() for _ in range(4)]
    nt = 3 if fh == 0 else 2
    fX = [ra.get(4, 4) for _ in range(2)]
    fW = [[ra.get(4, 4) for _ in range(nt)] for _ in range(2)]
    acc = [ra.get(16, 4) for _ in range(nt)]
    sXo, sWo, sTo, sM, sMt = 64, 65, 66, 67, 68
    qk = role == 'qk'
    a(f'''
    v_lshrrev_b32 v{t0}, 3, v1
    v_and_b32 v{t1}, 7, v1
    v_lshrrev_b32 v{t2}, 1, v{t0}
    v_xor_b32 v{t1}, v{t1}, v{t2}
    v_mul_u32_u24 v{t0}, 1152, v{t0}
    v_lshl_add_u32 v{vX0}, v{t1}, 4, v{t0}
    v_xor_b32 v{t1}, 4, v{t1}
    v_lshl_add_u32 v{vX1}, v{t1}, 4, v{t0}
    v_add_u32 v{vX1}, {8*1152}, v{vX1}
    s_lshl_b32 s{sXo}, s62, 3
    s_add_u32 s{sXo}, s{sXo}, s3
    s_mul_i32 s{sXo}, s{sXo}, {16*1152}
    s_lshl_b32 s{sM}, s3, 11
    s_add_u32 m0, s{sM}, 0
    v_lshrrev_b32 v{t0}, 4, v1
    ''')
    a(dma(SRD_X, vX0, f's{sXo}'))
    a(f'''
    s_add_u32 m0, s{sM}, 1024
    v_bfe_u32 v{t1}, v1, 2, 2
    ''')
    a(dma(SRD_X, vX1, f's{sXo}'))
    a(f'''
    v_and_b32 v{t2}, 3, v1
    v_mul_u32_u24 v{t0}, {72 if qk else 64}, v{t0}
    v_mul_u32_u24 v{t1}, 3456, v{t1}
    v_lshl_add_u32 v{t0}, v{t2}, 4, v{t0}
    v_add_u32 v{vW0}, v{t0}, v{t1}
    ''')
    if qk:
        a(f'''
        v_lshrrev_b32 v{t3}, 1, v{t2}
        v_lshl_add_u32 v{vW0}, v{t3}, 3, v{vW0}
        ''')
    a(f'''
    v_add_u32 v{vW1}, {4*3456}, v{vW0}
    s_mul_i32 s{sWo}, s63, 288
    s_mul_i32 s69, s3, {8*3456}
    s_add_u32 s{sTo}, s{sWo}, 0
    s_add_u32 s{sWo}, s{sWo}, s69
    s_add_u32 m0, s{sM}, 65536
    s_nop 0
    ''')
    a(dma(SRD_W, vW0, f's{sWo}'))
    a(f's_add_u32 m0, s{sM}, {65536+1024}\ns_nop 0')
    a(dma(SRD_W, vW1, f's{sWo}'))
    if fh == 1:
        a(f'''
        v_lshrrev_b32 v{t0}, 2, v1
        v_mul_u32_u24 v{t0}, 3456, v{t0}
        v_mul_u32_u24 v{t2}, {72 if qk else 16}, v{t2}
        v_add_u32 v{t0}, {32 if qk else 256}, v{t0}
        v_add_u32 v{vWt}, v{t0}, v{t2}
        s_sub_u32 s{sMt}, s3, 4
        s_mul_i32 s69, s{sMt}, {16*3456}
        s_add_u32 s{sTo}, s{sTo}, s69
        s_lshl_b32 s{sMt}, s{sMt}, 10
        s_add_u32 m0, s{sMt}, 131072
        s_nop 0
        ''')
        a(dma(SRD_W, vWt, f's{sTo}'))
    nld = 4 if fh == 0 else 5

    def issue(st):
        sl = st & 3
        L = [f's_add_u32 s{sXo}, s{sXo}, 128\ns_add_u32 m0, s{sM}, {sl*16384}\ns_add_u32 s{sWo}, s{sWo}, {64*3456}\n' + dma(SRD_X, vX0, f's{sXo}'),
             f's_add_u32 m0, s{sM}, {sl*16384+1024}\ns_nop 0\n' + dma(SRD_X, vX1, f's{sXo}'),
             f's_add_u32 m0, s{sM}, {65536+sl*16384}\ns_nop 0\n' + dma(SRD_W, vW0, f's{sWo}'),
             f's_add_u32 m0, s{sM}, {65536+sl*16384+1024}\ns_nop 0\n' + dma(SRD_W, vW1, f's{sWo}')]
        if fh == 1:
            L.append(f's_add_u32 m0, s{sMt}, {131072+sl*4096}\ns_add_u32 s{sTo}, s{sTo}, {64*3456}\n' + dma(SRD_W, vWt, f's{sTo}'))
        return L
    for st in (1, 2, 3):
        for x in issue(st):
            a(x)
    a(f'''
    v_and_b32 v{t0}, 31, v1
    v_lshrrev_b32 v{t1}, 5, v1
    v_bfe_u32 v{t2}, v1, 1, 3
    v_xor_b32 v{t2}, v{t2}, v{t1}
    s_and_b32 s69, s3, 3
    s_lshl_b32 s69, s69, 12
    v_lshlrev_b32 v{t0}, 7, v{t0}
    v_lshl_add_u32 v{t0}, v{t2}, 4, v{t0}
    v_add_u32 v{vXa[0]}, s69, v{t0}
    v_xor_b32 v{vXa[1]}, 32, v{vXa[0]}
    v_xor_b32 v{vXa[2]}, 64, v{vXa[0]}
    v_xor_b32 v{vXa[3]}, 0x60, v{vXa[0]}
    v_bfe_u32 v{t0}, v1, 2, 2
    v_and_b32 v{t2}, 3, v1
    v_bfe_u32 v{t3}, v1, 4, 1
    v_lshlrev_b32 v{t0}, 6, v{t0}
    v_lshl_add_u32 v{vWa}, v{t1}, 11, v{t0}
    v_lshl_add_u32 v{vWa}, v{t3}, 5, v{vWa}
    v_lshl_add_u32 v{vWa}, v{t2}, 3, v{vWa}
    v_add_u32 v{vWa}, {65536 + fh*512}, v{vWa}
    ''')
    if fh == 0:
        a(f'''
        v_lshl_add_u32 v{vTa}, v{t1}, 9, v{t0}
        v_lshl_add_u32 v{vTa}, v{t3}, {3 if qk else 5}, v{vTa}
        v_lshl_add_u32 v{vTa}, v{t2}, {4 if qk else 3}, v{vTa}
        v_add_u32 v{vTa}, 131072, v{vTa}
        ''')

    def reads(st, ks):
        sl = st & 3; b = ks & 1
        L = [f'ds_read_b128 {v(fX[b],4)}, v{vXa[ks]} offset:{sl*16384}']
        for f in range(nt):
            for u in range(2):
                if f < 2:
                    L.append(f'ds_read_b64_tr_b16 {v(fW[b][f]+2*u,2)}, v{vWa} offset:{sl*16384+(4*ks+u)*1024+f*256}')
                else:
                    L.append(f'ds_read_b64_tr_b16 {v(fW[b][f]+2*u,2)}, v{vTa} offset:{sl*4096+(4*ks+u)*256}')
        return L

    def mfmas(st, ks):
        b = ks & 1
        L = []
        for f in range(nt):
            A, B = (fW[b][f], fX[b]) if qk else (fX[b], fW[b][f])
            c = '0' if (st == 0 and ks == 0) else v(acc[f], 16)
            L.append(f'v_mfma_f32_32x32x16_bf16 {v(acc[f],16)}, {v(A,4)}, {v(B,4)}, {c}')
        return L
    nrd = 1 + 2*nt
    a(f's_waitcnt vmcnt({3*nld})\ns_barrier')
    stamp(a, 1, ST)
    for x in reads(0, 0):
        a(x)
    for st in range(9):
        for ks in range(4):
            if ks < 3:
                for x in reads(st, ks+1):
                    a(x)
                a(f's_waitcnt lgkmcnt({nrd})')
                for x in mfmas(st, ks):
                    a(x)
            else:
                if st < 8:
                    left = min(st+3, 8) - (st+1)
                    a(f's_waitcnt vmcnt({left*nld}) lgkmcnt(0)\ns_barrier')
                    for x in reads(st+1, 0):
                        a(x)
                    fill = issue(st+4) if st+4 <= 8 else []
                    for x in interleave(mfmas(st, ks), fill):
                        a(x)
                else:
                    a('s_waitcnt lgkmcnt(0)')
                    for x in mfmas(st, ks):
                        a(x)
    stamp(a, 2, ST)
    ws = f's[{SRD_WS}:{SRD_WS+3}]'
    pk = fX[0]
    assert fX[1] == fX[0] + 4
    a(f'''
    s_and_b32 s69, s3, 3
    s_and_b32 s70, s63, 3
    s_lshl_b32 s70, s70, 3
    s_lshr_b32 s71, s62, 1
    s_mul_i32 s71, s71, {KV_CHUNK}
    s_and_b32 s72, s62, 1
    ''')
    if qk:
        sc = hexf(DH ** -0.5 * LOG2E)
        a(f'''
        s_lshl_b32 s73, s72, 2
        s_add_u32 s73, s73, s69
        s_lshl_b32 s73, s73, 10
        s_add_u32 s73, s73, s71
        s_lshl_b32 s74, s62, 2
        s_add_u32 s74, s74, s69
        s_lshl_b32 s74, s74, 10
        s_add_u32 s74, s74, {WS_QM}
        s_lshl_b32 s75, s72, 9
        s_add_u32 s75, s75, s71
        s_add_u32 s75, s75, {WS_KV + 8192}
        s_lshl_b32 s76, s62, 9
        s_add_u32 s76, s76, {WS_QT}
        s_mov_b32 s78, {KV_HEAD}
        s_cmp_lt_u32 s63, 4
        s_cselect_b32 s73, s74, s73
        s_cselect_b32 s75, s76, s75
        s_cselect_b32 s74, 65536, s78
        s_cselect_b32 s76, 8192, s78
        s_cselect_b32 s77, {sc}, 1.0
        s_add_u32 s78, s70, {4*fh}
        s_mul_i32 s78, s78, s74
        s_add_u32 s73, s73, s78
        v_lshlrev_b32 v{t0}, 4, v1
        s_nop 7
        ''')
        for f in range(2):
            for hb in range(2):
                r = acc[f] + 8*hb
                d = pk + 4*hb
                for j in range(8):
                    a(f'v_mul_f32 v{r+j}, s77, v{r+j}')
                for j in range(4):
                    a(f'v_cvt_pk_bf16_f32 v{d+j}, v{r+2*j}, v{r+2*j+1}')
                a(f'buffer_store_dwordx4 {v(d,4)}, v{t0}, {ws}, s73 offen')
                if not (f == 1 and hb == 1):
                    a(f's_add_u32 s73, s73, s74')
        if fh == 0:
            r = acc[2]
            a(f'''
            s_lshr_b32 s78, s69, 1
            s_lshl_b32 s78, s78, 8
            s_add_u32 s75, s75, s78
            s_and_b32 s78, s69, 1
            s_lshl_b32 s78, s78, 2
            s_add_u32 s75, s75, s78
            s_mul_i32 s78, s70, s76
            s_add_u32 s75, s75, s78
            s_lshl_b32 s78, s76, 1
            v_lshrrev_b32 v{t1}, 5, v1
            v_and_b32 v{t2}, 31, v1
            v_mul_lo_u32 v{t1}, v{t1}, s78
            v_lshl_add_u32 v{t1}, v{t2}, 3, v{t1}
            s_mul_i32 s78, s76, 3
            ''')
            for j in range(8):
                a(f'v_mul_f32 v{r+j}, s77, v{r+j}')
            for e in range(4):
                a(f'v_cvt_pk_bf16_f32 v{r+8+e}, v{r+2*e}, v{r+2*e+1}')
            for e in range(4):
                a(f'buffer_store_dword v{r+8+e}, v{t1}, {ws}, s75 offen')
                if e < 3:
                    a(f's_add_u32 s75, s75, {"s76" if e != 1 else "s78"}')
    else:
        a(f'''
        s_lshl_b32 s73, s72, 2
        s_add_u32 s73, s73, s69
        s_mul_i32 s73, s73, 1216
        s_add_u32 s73, s73, s71
        s_mul_i32 s74, s70, {KV_HEAD}
        s_add_u32 s73, s73, s74
        s_add_u32 s73, s73, {WS_KV + 9216}
        s_mov_b32 s74, {KV_HEAD - 18*16}
        v_and_b32 v{t0}, 31, v1
        v_lshrrev_b32 v{t1}, 5, v1
        v_mul_u32_u24 v{t1}, 304, v{t1}
        s_nop 3
        ''')
        tiles = [2*fh, 2*fh+1] + ([4] if fh == 0 else [])
        for fi, f in enumerate(tiles):
            va = vXa[fi]
            a(f'''
            v_add_u32 v{t2}, {32*f}, v{t0}
            v_mul_u32_u24 v{t3}, 57, v{t2}
            v_lshrrev_b32 v{t3}, 10, v{t3}
            v_mul_lo_u32 v{t3}, v{t3}, s74
            v_lshl_add_u32 v{t2}, v{t2}, 4, v{t1}
            v_add_u32 v{va}, v{t2}, v{t3}
            ''')
            if f == 4:
                a(f'''
                s_mov_b32 s75, {KV_HEAD}
                v_subrev_u32 v{t2}, 16, v{t0}
                v_mul_lo_u32 v{t2}, v{t2}, s75
                v_add_u32 v{t2}, v{t2}, v{t1}
                v_add_u32 v{t2}, {18*16}, v{t2}
                v_cmp_le_u32 s[76:77], 16, v{t0}
                v_cmp_le_u32 s[78:79], 24, v{t0}
                v_mov_b32 v{t3}, {OOB}
                v_cndmask_b32 v{va}, v{va}, v{t2}, s[76:77]
                v_cndmask_b32 v{va}, v{va}, v{t3}, s[78:79]
                v_mov_b32 v{t3}, 0x3f803f80
                ''')
            for m in range(2):
                r = acc[fi] + 8*m
                d = pk + 4*m
                for j in range(4):
                    a(f'v_cvt_pk_bf16_f32 v{d+j}, v{r+2*j}, v{r+2*j+1}')
                if f == 4:
                    for j in range(4):
                        a(f'v_cndmask_b32 v{d+j}, v{d+j}, v{t3}, s[76:77]')
                a(f'buffer_store_dwordx4 {v(d,4)}, v{va}, {ws}, s73 offen offset:{608*m}')
    stamp(a, 3, ST)


def attn_setup(a):
    a(f'''
    s_lshl_b32 s62, s{sXCD}, 2
    s_lshr_b32 s63, s{sIDX}, 3
    s_add_u32 s62, s62, s63
    s_and_b32 s63, s{sIDX}, 7
    ''')


class AttnRegs:
    def __init__(self):
        ra = RegAlloc(2, 250)
        self.vKa, self.vTa, self.vVa = ra.get(), ra.get(), ra.get()
        self.t = [ra.get() for _ in range(5)]
        self.Qm = ra.get(4, 4)
        self.Qt = [ra.get(2, 2) for _ in range(4)]
        self.Km = ra.get(4, 4)
        self.V0 = ra.get(4, 4)
        self.V1 = ra.get(4, 4)
        self.Kt = ra.get(2, 2)
        self.T = ra.get(4, 2)
        self.P = ra.get(8, 4)
        self.S = [ra.get(16, 4), ra.get(16, 4)]
        self.O = ra.get(16, 4)
        self.NM = ra.get(16, 4)
        self.hi = ra.hi


def attn_issue_loads(a, R):
    t = R.t
    ws = f's[{SRD_WS}:{SRD_WS+3}]'
    a(f'''
    v_lshlrev_b32 v{R.vKa}, 4, v1
    s_lshl_b32 s64, s63, 3
    s_add_u32 s64, s64, s3
    s_lshl_b32 s65, s62, 16
    s_lshl_b32 s66, s64, 10
    s_add_u32 s65, s65, s66
    s_add_u32 s65, s65, {WS_QM}
    buffer_load_dwordx4 {v(R.Qm,4)}, v{R.vKa}, {ws}, s65 offen
    s_lshl_b32 s65, s62, 13
    s_lshr_b32 s66, s64, 1
    s_lshl_b32 s66, s66, 8
    s_add_u32 s65, s65, s66
    s_and_b32 s66, s64, 1
    s_lshl_b32 s66, s66, 2
    s_add_u32 s65, s65, s66
    s_add_u32 s65, s65, {WS_QT}
    v_and_b32 v{t[0]}, 31, v1
    v_lshlrev_b32 v{t[1]}, 3, v{t[0]}
    buffer_load_dword v{t[4]}, v{t[1]}, {ws}, s65 offen
    s_mul_i32 s65, s62, {KV_HEAD}
    s_lshl_b32 s66, s3, 10
    s_add_u32 s65, s65, s66
    s_add_u32 m0, s66, 0
    s_add_u32 s65, s65, {WS_KV}
    ''')
    for i in range(19):
        a(dma(SRD_WS, R.vKa, 's65'))
        if i < 18:
            a(f's_add_u32 m0, s66, {(i+1)*8192}\ns_add_u32 s65, s65, 8192')


def attn_phase(a, R, ST):
    t = R.t
    ws = f's[{SRD_WS}:{SRD_WS+3}]'
    sC, sFLAG = 67, 68
    a(f'''
    v_lshlrev_b32 v{R.vTa}, 3, v1
    v_add_u32 v{R.vTa}, 8192, v{R.vTa}
    v_lshrrev_b32 v{t[1]}, 5, v1
    v_mul_u32_u24 v{t[1]}, 304, v{t[1]}
    v_subrev_u32 v{t[2]}, 20, v{t[0]}
    v_cmp_gt_u32 s[70:71], 8, v{t[2]}
    v_cmp_lt_u32 s[72:73], 18, v{t[0]}
    v_cmp_gt_u32 s[74:75], 32, v1
    v_cndmask_b32 v{t[2]}, 4, 0, s[70:71]
    v_cndmask_b32 v{t[2]}, v{t[0]}, v{t[2]}, s[72:73]
    v_lshl_add_u32 v{R.vVa}, v{t[2]}, 4, v{t[1]}
    v_add_u32 v{R.vVa}, 9216, v{R.vVa}
    s_mov_b32 s{sFLAG}, 0
    ''')
    for j in range(16):
        a(f'v_mov_b32 v{R.NM+j}, 0')
    a(f's_waitcnt vmcnt(19)')
    a(f'''
    v_cndmask_b32 v{R.Qt[0]}, 0, v{t[4]}, s[74:75]
    v_mov_b32 v{R.Qt[0]+1}, 0
    v_mov_b32 v{R.Qt[1]}, 0
    v_cndmask_b32 v{R.Qt[1]+1}, 0, v{t[4]}, s[74:75]
    v_cndmask_b32 v{R.Qt[2]}, v{t[4]}, 0, s[74:75]
    v_mov_b32 v{R.Qt[2]+1}, 0
    v_mov_b32 v{R.Qt[3]}, 0
    v_cndmask_b32 v{R.Qt[3]+1}, v{t[4]}, 0, s[74:75]
    s_waitcnt vmcnt(16)
    s_barrier
    ''')
    stamp(a, 5, ST)
    Lrun, Lloop, Lredo, Ldone = a.newlabel('arun'), a.newlabel('aloop'), a.newlabel('aredo'), a.newlabel('adone')
    a.label(Lrun)

    def ldK(tau): return f'ds_read_b128 {v(R.Km,4)}, v{R.vKa} offset:{(tau>>3)*KV_CHUNK + (tau&7)*1024}'
    def ldT(g): return f'ds_read_b64 {v(R.Kt,2)}, v{R.vTa} offset:{(g>>1)*KV_CHUNK + (g&1)*512}'
    def ldV(tau, m): return f'ds_read_b128 {v(R.V1 if m else R.V0,4)}, v{R.vVa} offset:{(tau>>3)*KV_CHUNK + (tau&7)*1216 + m*608}'
    def mA(tau): return f'v_mfma_f32_32x32x16_bf16 {v(R.S[tau&1],16)}, {v(R.Km,4)}, {v(R.Qm,4)}, {v(R.NM,16)}'
    def mB(tau): return f'v_mfma_f32_32x32x8_bf16 {v(R.S[tau&1],16)}, {v(R.Kt,2)}, {v(R.Qt[tau&3],2)}, {v(R.S[tau&1],16)}'
    def mV(m): return f'v_mfma_f32_32x32x16_bf16 {v(R.O,16)}, {v(R.V1 if m else R.V0,4)}, {v(R.P+4*m,4)}, {v(R.O,16)}'
    a(ldK(0)); a(ldT(0))
    for j in range(16):
        a(f'v_mov_b32 v{R.O+j}, 0')
    for j in range(4):
        a(f'v_mov_b32 v{R.V1+j}, 0\nv_mov_b32 v{R.P+4+j}, 0')
    a(f'v_mov_b32 v{R.T+2}, 0\nv_mov_b32 v{R.T+3}, 0\ns_mov_b32 s{sC}, 0')
    a('s_waitcnt lgkmcnt(0)')
    a(mA(0)); a(ldK(1)); a(mB(0))
    a(f'ds_read_b32 v{t[3]}, v{R.vKa}')
    a(ldV(0, 0))
    a('s_nop 7\ns_nop 3')
    a('.p2align 6')
    a.label(Lloop)
    q = ['K', 'V1', 'V0']

    def wait(name):
        if name in q:
            i = q.index(name)
            n = len(q) - 1 - i
            del q[:i+1]
            return f's_waitcnt lgkmcnt({n})'
        return None
    a(wait('K'))
    for tau in range(8):
        S = R.S[tau & 1]; Tt = R.T; P = R.P
        def e(i): return f'v_exp_f32 v{Tt+(i&3)}, v{S+i}'
        def c(i): return f'v_cvt_pk_bf16_f32 v{P+i}, v{Tt+((2*i)&3)}, v{Tt+((2*i)&3)+1}'
        if tau == 5:
            Lnb, Lw0 = a.newlabel('nobar'), a.newlabel('w0')
            a(f'''
            s_add_u32 s69, s{sC}, s{sFLAG}
            s_cmp_gt_u32 s69, 1
            s_cbranch_scc1 {Lnb}
            s_waitcnt vmcnt(14)
            s_cmp_eq_u32 s69, 0
            s_cbranch_scc1 {Lw0}
            s_waitcnt vmcnt(0)
            ''')
            a.label(Lw0)
            a('s_barrier')
            a.label(Lnb)
        a(mA(tau+1)); a(ldK(tau+2)); q.append('K')
        a(c(7)); a(e(0)); a(e(1)); a(e(2)); a(c(0)); a(e(3))
        w = wait('T')
        a(w if w else 's_nop 0')
        a(mB(tau+1))
        if ((tau+1) & 3) == 3:
            a(ldT((tau+2) >> 2)); q.append('T')
        a(c(1)); a(e(4)); a(e(5)); a(e(6)); a(c(2)); a(e(7))
        w = wait('V1'); a(w if w else 's_nop 0')
        a(mV(1)); a(ldV(tau, 1)); q.append('V1')
        a(c(3)); a(e(8)); a(e(9)); a(e(10)); a(c(4)); a(e(11))
        w = wait('V0'); a(w if w else 's_nop 0')
        a(mV(0)); a(ldV(tau+1, 0)); q.append('V0')
        a(c(5)); a(e(12)); a(e(13))
        if tau == 7:
            a(f's_add_u32 s{sC}, s{sC}, 1')
        a(e(14))
        if tau == 7:
            a(f's_cmp_lt_u32 s{sC}, 8')
        a(c(6)); a(e(15))
        if tau < 7:
            a(wait('K'))
    assert q == ['K', 'V1', 'V0'], q
    a(f'''
    v_add_u32 v{R.vKa}, {KV_CHUNK}, v{R.vKa}
    v_add_u32 v{R.vTa}, {KV_CHUNK}, v{R.vTa}
    v_add_u32 v{R.vVa}, {KV_CHUNK}, v{R.vVa}
    s_cbranch_scc1 {Lloop}
    v_cvt_pk_bf16_f32 v{R.P+7}, v{R.T+2}, v{R.T+3}
    s_waitcnt lgkmcnt(0)
    v_subrev_u32 v{R.vKa}, {8*KV_CHUNK}, v{R.vKa}
    ''')
    a(mV(1))
    a(f'''
    v_subrev_u32 v{R.vTa}, {8*KV_CHUNK}, v{R.vTa}
    v_subrev_u32 v{R.vVa}, {8*KV_CHUNK}, v{R.vVa}
    s_nop 9
    ''')
    stamp(a, 6, ST)
    O = R.O
    a(f'''
    v_mov_b32 v{t[0]}, v{O+10}
    v_mov_b32 v{t[1]}, v{O+10}
    v_max3_f32 v{t[2]}, abs(v{O}), abs(v{O+1}), abs(v{O+2})
    v_max3_f32 v{t[3]}, abs(v{O+3}), abs(v{O+4}), abs(v{O+5})
    v_permlane32_swap_b32 v{t[0]}, v{t[1]}
    v_max3_f32 v{t[2]}, v{t[2]}, abs(v{O+6}), abs(v{O+7})
    v_max3_f32 v{t[3]}, v{t[3]}, abs(v{O+8}), abs(v{O+9})
    s_cmp_lg_u32 s{sFLAG}, 0
    s_cbranch_scc1 {Ldone}
    v_max_f32 v{t[2]}, v{t[2]}, v{t[3]}
    s_mov_b32 s69, {hexf(2.0**-64)}
    s_mov_b32 s76, {hexf(2.0**64)}
    s_mov_b32 s77, {hexf(2.0**126)}
    v_cmp_nle_f32 s[70:71], s69, v{t[0]}
    v_cmp_nge_f32 s[72:73], s76, v{t[0]}
    v_cmp_nge_f32 vcc, s77, v{t[2]}
    s_or_b64 s[70:71], s[70:71], s[72:73]
    s_or_b64 vcc, vcc, s[70:71]
    s_cbranch_vccnz {Lredo}
    ''')
    a.label(Ldone)
    a(f'''
    v_rcp_f32 v{t[0]}, v{t[0]}
    s_lshl_b32 s64, s63, 4
    s_lshl_b32 s65, s3, 1
    s_add_u32 s64, s64, s65
    s_mul_i32 s64, s64, 18432
    s_add_u32 s64, s64, {WS_O}
    s_lshl_b32 s65, s62, 9
    s_add_u32 s65, s65, s64
    s_lshr_b32 s66, s62, 2
    s_lshl_b32 s66, s66, 8
    s_add_u32 s64, s64, s66
    s_and_b32 s66, s62, 3
    s_lshl_b32 s66, s66, 2
    s_add_u32 s64, s64, s66
    s_add_u32 s64, s64, 16384
    v_bfe_u32 v{t[1]}, v1, 4, 1
    v_and_b32 v{t[2]}, 15, v1
    v_mul_u32_u24 v{t[1]}, 18432, v{t[1]}
    v_lshl_add_u32 v{t[1]}, v{t[2]}, 4, v{t[1]}
    v_lshrrev_b32 v{t[2]}, 5, v1
    v_lshl_add_u32 v{t[2]}, v{t[2]}, 8, v{t[1]}
    v_mov_b32 v{t[3]}, {OOB}
    v_cndmask_b32 v{t[1]}, v{t[3]}, v{t[1]}, s[74:75]
    ''')
    for j in range(10):
        a(f'v_mul_f32 v{O+j}, v{t[0]}, v{O+j}')
    for j in range(5):
        a(f'v_cvt_pk_bf16_f32 v{R.P+j}, v{O+2*j}, v{O+2*j+1}')
    a(f'''
    buffer_store_dwordx4 {v(R.P,4)}, v{t[2]}, {ws}, s65 offen
    buffer_store_dword v{R.P+4}, v{t[1]}, {ws}, s64 offen
    ''')
    stamp(a, 7, ST)

    def redo():
        Lm = a.newlabel('amax')
        S = R.S[0]
        a.label(Lredo)
        a(f'''
        v_mov_b32 v{t[2]}, 0xff800000
        s_mov_b32 s{sC}, 0
        ''')
        a.label(Lm)
        for tau in range(8):
            a(ldK(tau))
            if (tau & 3) == 0:
                a(ldT(tau >> 2))
            a('s_waitcnt lgkmcnt(0)')
            a(f'v_mfma_f32_32x32x16_bf16 {v(S,16)}, {v(R.Km,4)}, {v(R.Qm,4)}, 0')
            a(f'v_mfma_f32_32x32x8_bf16 {v(S,16)}, {v(R.Kt,2)}, {v(R.Qt[tau&3],2)}, {v(S,16)}')
            a('s_nop 11')
            for j in range(8):
                a(f'v_max3_f32 v{t[2]}, v{t[2]}, v{S+2*j}, v{S+2*j+1}')
        a(f'''
        v_add_u32 v{R.vKa}, {KV_CHUNK}, v{R.vKa}
        v_add_u32 v{R.vTa}, {KV_CHUNK}, v{R.vTa}
        s_add_u32 s{sC}, s{sC}, 1
        s_cmp_lt_u32 s{sC}, 8
        s_cbranch_scc1 {Lm}
        v_mov_b32 v{t[3]}, v{t[2]}
        v_subrev_u32 v{R.vKa}, {8*KV_CHUNK}, v{R.vKa}
        v_subrev_u32 v{R.vTa}, {8*KV_CHUNK}, v{R.vTa}
        v_permlane32_swap_b32 v{t[2]}, v{t[3]}
        s_mov_b32 s{sFLAG}, 2
        v_max_f32 v{t[2]}, v{t[2]}, v{t[3]}
        ''')
        for j in range(16):
            a(f'v_sub_f32 v{R.NM+j}, 0, v{t[2]}')
        a(f's_branch {Lrun}')
    return redo


XCH = 110592


class OutRegs:
    def __init__(self):
        ra = RegAlloc(2, 250)
        self.t = [ra.get() for _ in range(6)]
        self.vM = [ra.get() for _ in range(3)]
        self.vT = [ra.get() for _ in range(3)]
        self.vAe, self.vAo = ra.get(), ra.get()
        self.Of = [ra.get(4, 4) for _ in range(9)]
        self.fA = [[ra.get(4, 4) for _ in range(6)] for _ in range(2)]
        self.acc = [ra.get(4, 4) for _ in range(6)]


def out_setup(a):
    a(f'''
    s_lshl_b32 s62, s{sXCD}, 2
    s_and_b32 s63, s{sIDX}, 3
    s_add_u32 s62, s62, s63
    s_lshr_b32 s63, s{sIDX}, 2
    ''')


def out_issue_wo(a, R):
    t = R.t
    for i in range(3):
        a(f'''
        v_add_u32 v{t[0]}, {64*i}, v1
        v_mul_u32_u24 v{t[1]}, 171, v{t[0]}
        v_lshrrev_b32 v{t[1]}, 11, v{t[1]}
        v_mul_u32_u24 v{t[2]}, 12, v{t[1]}
        v_sub_u32 v{t[0]}, v{t[0]}, v{t[2]}
        v_lshrrev_b32 v{t[2]}, 3, v{t[1]}
        v_lshlrev_b32 v{t[3]}, 1, v{t[2]}
        v_xor_b32 v{t[0]}, v{t[0]}, v{t[3]}
        v_lshlrev_b32 v{t[0]}, 4, v{t[0]}
        v_and_b32 v{t[3]}, 3, v{t[1]}
        v_bfe_u32 v{t[4]}, v{t[1]}, 2, 1
        v_lshl_add_u32 v{t[3]}, v{t[4]}, 3, v{t[3]}
        v_lshl_add_u32 v{t[3]}, v{t[2]}, 2, v{t[3]}
        v_mul_u32_u24 v{t[3]}, 1152, v{t[3]}
        v_add_u32 v{R.vM[i]}, v{t[3]}, v{t[0]}
        v_lshrrev_b32 v{t[3]}, 1, v{t[1]}
        v_mul_u32_u24 v{t[3]}, 18, v{t[3]}
        v_and_b32 v{t[4]}, 1, v{t[1]}
        v_add3_u32 v{t[3]}, v{t[3]}, v{t[4]}, 16
        v_mul_u32_u24 v{t[3]}, 1152, v{t[3]}
        v_add_u32 v{R.vT[i]}, v{t[3]}, v{t[0]}
        ''')
    a(f'''
    s_mul_i32 s64, s63, 192
    s_mul_i32 s65, s3, {18*1152}
    s_add_u32 s65, s65, s64
    s_mul_i32 s66, s3, 3072
    ''')
    for k in range(4):
        for i in range(3):
            a(f's_add_u32 m0, s66, {k*8*3072 + i*1024}')
            a('s_nop 0' if (i or not k) else f's_add_u32 s65, s65, {8*18*1152}')
            a(dma(SRD_WO, R.vM[i], 's65'))
    Ls = a.newlabel('notail')
    a(f'''
    s_cmp_gt_u32 s3, 3
    s_cbranch_scc1 {Ls}
    s_mul_i32 s65, s3, {8*18*1152}
    s_add_u32 s65, s65, s64
    ''')
    for i in range(3):
        a(f's_add_u32 m0, s66, {32*3072 + i*1024}\ns_nop 0')
        a(dma(SRD_WO, R.vT[i], 's65'))
    a.label(Ls)


def out_issue_o(a, R):
    t = R.t
    ws = f's[{SRD_WS}:{SRD_WS+3}]'
    a(f'''
    s_lshl_b32 s64, s62, 2
    s_and_b32 s65, s3, 3
    s_add_u32 s64, s64, s65
    s_mul_i32 s64, s64, 18432
    s_lshr_b32 s65, s3, 2
    s_mul_i32 s65, s65, 9216
    s_add_u32 s64, s64, s65
    s_add_u32 s64, s64, {WS_O}
    s_add_u32 s65, s64, 4096
    s_add_u32 s66, s64, 8192
    v_lshlrev_b32 v{t[5]}, 4, v1
    ''')
    for k in range(9):
        a(f'buffer_load_dwordx4 {v(R.Of[k],4)}, v{t[5]}, {ws}, s{64 + k//4} offen offset:{(k%4)*1024}')


def out_phase(a, R, ST):
    t = R.t
    a(f'''
    v_lshrrev_b32 v{t[0]}, 4, v1
    v_bfe_u32 v{t[1]}, v1, 2, 2
    v_lshl_add_u32 v{t[1]}, v{t[0]}, 3, v{t[1]}
    v_mul_u32_u24 v{t[1]}, 192, v{t[1]}
    v_and_b32 v{t[2]}, 3, v1
    v_lshl_add_u32 v{t[1]}, v{t[2]}, 3, v{t[1]}
    s_lshr_b32 s67, s3, 2
    s_mul_i32 s67, s67, 55296
    v_add_u32 v{t[1]}, s67, v{t[1]}
    v_and_b32 v{t[2]}, 1, v{t[0]}
    v_lshlrev_b32 v{t[2]}, 5, v{t[2]}
    v_add_u32 v{R.vAe}, v{t[1]}, v{t[2]}
    v_sub_u32 v{R.vAo}, v{t[1]}, v{t[2]}
    s_waitcnt vmcnt(9)
    s_barrier
    ''')
    stamp(a, 9, ST)

    def reads(k):
        L = []
        for f in range(6):
            for u in range(2):
                L.append(f'ds_read_b64_tr_b16 {v(R.fA[k&1][f]+2*u,2)}, v{R.vAo if f&1 else R.vAe} offset:{k*6144+u*768+f*32}')
        return L
    for x in reads(0):
        a(x)
    for k in range(9):
        mf = [f'v_mfma_f32_16x16x32_bf16 {v(R.acc[f],4)}, {v(R.fA[k&1][f],4)}, {v(R.Of[k],4)}, {v(R.acc[f],4) if k else 0}' for f in range(6)]
        a(f's_waitcnt vmcnt({8-k}) lgkmcnt(0)')
        for x in interleave(mf, reads(k+1) if k < 8 else []):
            a(x)
    stamp(a, 10, ST)
    out = f's[{SRD_OUT}:{SRD_OUT+3}]'
    L1, Lj = a.newlabel('kh1'), a.newlabel('khj')
    a(f'''
    s_mul_i32 s64, s3, 3072
    s_xor_b32 s65, s3, 4
    s_mul_i32 s65, s65, 3072
    v_add_u32 v{t[0]}, {XCH}, v{t[5]}
    v_add_u32 v{t[1]}, s65, v{t[0]}
    v_add_u32 v{t[0]}, s64, v{t[0]}
    s_lshl_b32 s64, s62, 2
    s_and_b32 s65, s3, 3
    s_add_u32 s64, s64, s65
    s_mul_i32 s64, s64, {16*2304}
    s_mul_i32 s65, s63, 192
    s_add_u32 s64, s64, s65
    s_add_u32 s64, s64, 1152
    v_and_b32 v{t[2]}, 15, v1
    v_mul_u32_u24 v{t[2]}, 2304, v{t[2]}
    v_lshrrev_b32 v{t[3]}, 4, v1
    v_lshl_add_u32 v{t[2]}, v{t[3]}, 3, v{t[2]}
    s_cmp_gt_u32 s3, 3
    s_cbranch_scc1 {L1}
    ''')
    for kh in range(2):
        if kh == 1:
            a.label(L1)
        keep = [3*kh + i for i in range(3)]
        send = [3*(1-kh) + i for i in range(3)]
        for i, f in enumerate(send):
            a(f'ds_write_b128 v{t[0]}, {v(R.acc[f],4)} offset:{i*1024}')
        a('s_waitcnt lgkmcnt(0)\ns_barrier')
        for i in range(3):
            a(f'ds_read_b128 {v(R.fA[0][i],4)}, v{t[1]} offset:{i*1024}')
        for i, f in enumerate(keep):
            a(f's_waitcnt lgkmcnt({2-i})')
            for j in range(4):
                a(f'v_add_f32 v{R.acc[f]+j}, v{R.acc[f]+j}, v{R.fA[0][i]+j}')
            a(f'v_cvt_pk_bf16_f32 v{R.fA[1][i]}, v{R.acc[f]}, v{R.acc[f]+1}')
            a(f'v_cvt_pk_bf16_f32 v{R.fA[1][i]+1}, v{R.acc[f]+2}, v{R.acc[f]+3}')
            a(f'buffer_store_dwordx2 {v(R.fA[1][i],2)}, v{t[2]}, {out}, s64 offen offset:{32*f}')
        if kh == 0:
            a(f's_branch {Lj}')
    a.label(Lj)
    stamp(a, 11, ST)
```

```python
import sys
from asmlib import *
from layout import *
from phases import *
from ssm import *

NAME = 'concat_heads__ssm_conv_s4__mha_block__prompt'
LDS = 163840
DBGCOPY = None

def kernel_head(a, name):
    a(f'.p2align 8\n.globl {name}\n.type {name},@function')
    a.label(name)

def descriptor(name, vgpr=256):
    return f'''.amdhsa_kernel {name}
  .amdhsa_next_free_vgpr {vgpr}
  .amdhsa_next_free_sgpr 102
  .amdhsa_accum_offset {vgpr}
  .amdhsa_group_segment_fixed_size 0
  .amdhsa_kernarg_size 120
  .amdhsa_user_sgpr_count 2
  .amdhsa_user_sgpr_kernarg_segment_ptr 1
  .amdhsa_system_sgpr_workgroup_id_x 1
.end_amdhsa_kernel
'''

def p1_body(a, end, ST):
    Lssm, Lv, Lq1, Lv1 = [a.newlabel(x) for x in ('ssm', 'v', 'q1', 'v1')]
    a(f's_cmp_ge_u32 s{sIDX}, 24\ns_cbranch_scc1 {Lssm}')
    gemm_setup(a)
    a(f's_cmp_ge_u32 s63, 8\ns_cbranch_scc1 {Lv}')
    a(f's_cmp_ge_u32 s3, 4\ns_cbranch_scc1 {Lq1}')
    gemm_phase(a, 'qk', 0, ST); a(f's_branch {end}')
    a.label(Lq1)
    gemm_phase(a, 'qk', 1, ST); a(f's_branch {end}')
    a.label(Lv)
    a(f's_cmp_ge_u32 s3, 4\ns_cbranch_scc1 {Lv1}')
    gemm_phase(a, 'v', 0, ST); a(f's_branch {end}')
    a.label(Lv1)
    gemm_phase(a, 'v', 1, ST); a(f's_branch {end}')
    a.label(Lssm)
    R = KgenRegs()
    a(f'''
    s_lshl_b32 s62, s{sXCD}, 3
    s_add_u32 s62, s62, s{sIDX}
    s_sub_u32 s62, s62, 24
    s_mul_i32 s63, s62, 9
    s_add_u32 s63, s63, s3
    v_lshlrev_b32 v{R.vP}, 2, v1
    ''')
    ut_issue(a, R.ut, 0)
    kgen_load(a, R, 63)
    kgen_setup(a, R)
    a('s_waitcnt vmcnt(8)\ns_barrier')
    stamp(a, 1, ST)
    ut_store(a, R.ut, R.ud, 0)
    a('s_barrier')
    a('s_waitcnt vmcnt(0)')
    for x in ut_stores(a, R.ut, R.ud): a(x)
    Lk = a.newlabel('kch')
    a('s_mov_b32 s80, 0')
    a.label(Lk)
    kgen_compute(a, R, 63, 63)
    stamp(a, 2, ST)
    a(f'''
    s_add_u32 s81, s3, s80
    s_cmp_lg_u32 s81, 0
    s_cbranch_scc1 {end}
    s_mov_b32 s80, 1
    s_add_u32 s63, s63, 8
    ''')
    kgen_load(a, R, 63)
    a(f's_waitcnt vmcnt(0)\ns_branch {Lk}')

def conv_body(a, ST):
    C = ConvRegs()
    Lidle, L1, Lj, Lend = [a.newlabel(x) for x in ('cidle', 'c1', 'cj', 'cend')]
    conv_setup(a)
    a(f's_cmp_ge_u32 s3, s65\ns_cbranch_scc1 {Lidle}')
    conv_issue(a, C, 0)
    a('s_waitcnt vmcnt(0) lgkmcnt(0)\ns_barrier')
    stamp(a, 12, ST)
    conv_compute(a, C, 0)
    stamp(a, 13, ST)
    a(f's_cmp_eq_u32 s67, 1\ns_cbranch_scc1 {L1}')
    conv_send(a, C, 0); a('s_barrier'); conv_finish(a, C, 0); a(f's_branch {Lend}')
    a.label(L1)
    conv_send(a, C, 1); a('s_barrier'); conv_finish(a, C, 1); a(f's_branch {Lend}')
    a.label(Lidle)
    a('s_barrier\ns_barrier')
    a.label(Lend)
    a('s_barrier')
    stamp(a, 14, ST)

def build(ST=False):
    a = Asm()
    ref = open('cdna_kernels/%s.s.ref' % NAME).read().split('\n')
    head = [l for l in ref if l.startswith(';') and '@launch' not in l and 'Override launch' not in l and 'grid=ceil' not in l]
    a.lines += head
    for k in ('p1_kernel', 'p2_kernel', 'p3_kernel'):
        a.lines.append(f'; @launch kernel={k} grid=(256,1,1) block=(512,1,1) lds={LDS}')
    a('.amdgcn_target "amdgcn-amd-amdhsa--gfx950"\n.text')
    kernel_head(a, 'p1_kernel')
    prologue(a, 'L_end1')
    stamp(a, 0, ST)
    p1_body(a, 'L_end1', ST)
    a.label('L_end1'); a('s_endpgm')
    kernel_head(a, 'p2_kernel')
    prologue(a, 'L_end2')
    stamp(a, 4, ST)
    conv_body(a, ST)
    R = AttnRegs()
    attn_setup(a)
    attn_issue_loads(a, R)
    redo = attn_phase(a, R, ST)
    a.label('L_end2'); a('s_endpgm')
    redo()
    kernel_head(a, 'p3_kernel')
    prologue(a, 'L_end3')
    stamp(a, 8, ST)
    Ly = a.newlabel('yt')
    a(f's_cmp_ge_u32 s{sIDX}, 24\ns_cbranch_scc1 {Ly}')
    O = OutRegs()
    out_setup(a)
    out_issue_wo(a, O)
    out_issue_o(a, O)
    out_phase(a, O, ST)
    if DBGCOPY is not None:
        a(f'''
        s_add_u32 s64, s2, s3
        s_cmp_lg_u32 s64, 0
        s_cbranch_scc1 L_end3
        s_waitcnt vmcnt(0)
        v_lshlrev_b32 v2, 3, v1
        v_lshlrev_b32 v3, 2, v1
        s_mov_b32 s64, {WS_STAMP + DBGCOPY*1024}
        s_mov_b64 exec, 0xffff
        buffer_load_dword v4, v2, s[{SRD_WS}:{SRD_WS+3}], s64 offen sc0 sc1
        s_waitcnt vmcnt(0)
        v_readfirstlane_b32 s64, v4
        s_nop 3
        v_subrev_u32 v4, s64, v4
        global_store_dword v3, v4, s[{sDBG}:{sDBG+1}]
        ''')
    a('s_branch L_end3')
    a.label(Ly)
    a(f'''
    s_lshl_b32 s62, s{sXCD}, 3
    s_add_u32 s62, s62, s{sIDX}
    s_sub_u32 s62, s62, 24
    ''')
    yt_phase(a, ST)
    stamp(a, 11, ST)
    a.label('L_end3'); a('s_endpgm')
    a('.section .rodata,"a"')
    txt = a.text()
    for k in ('p1_kernel', 'p2_kernel', 'p3_kernel'):
        txt += '.p2align 6\n' + descriptor(k)
    return txt

if __name__ == '__main__':
    st = 3 if '--dbg' in sys.argv else 2 if '--rt' in sys.argv else (1 if '--stamp' in sys.argv else 0)
    if '--copy0' in sys.argv: DBGCOPY = 0
    if '--copy255' in sys.argv: DBGCOPY = 255
    out = [x for x in sys.argv[1:] if not x.startswith('--')]
    path = out[0] if out else 'cdna_kernels/%s.s' % NAME
    open(path, 'w').write(build(st))
    print('wrote', path)
```

```python
import math
from asmlib import *
from layout import *

sWG, sWAVE = 2, 3
SRD_X, SRD_W, SRD_WS, SRD_OUT, SRD_U, SRD_WO = 8, 12, 16, 20, 24, 28
sPAR = 32
sDBG = 48
sWSP = 50
sXCD, sIDX = 60, 61
vTID, vLANE = 0, 1
OOB = 0x7ffffff0

LOG2E = 1.4426950408889634
SC = ' sc1'
ROT = 3


def prologue(a, endlab):
    a(f'''
    s_cmp_ge_u32 s2, 256
    s_cbranch_scc1 {endlab}
    s_load_dwordx2 s[4:5], s[0:1], 0
    s_load_dwordx16 s[32:47], s[0:1], 8
    s_load_dwordx8 s[52:59], s[0:1], 72
    s_load_dwordx4 s[48:51], s[0:1], 104
    v_lshrrev_b32 v2, 6, v0
    v_and_b32 v1, 63, v0
    s_and_b32 s{sXCD}, s2, 7
    v_readfirstlane_b32 s3, v2
    s_lshr_b32 s{sIDX}, s2, 3
    s_mov_b32 s{SRD_X+2}, {X_BYTES}
    s_mov_b32 s{SRD_X+3}, 0x00020000
    s_mov_b32 s{SRD_W+2}, {W_BYTES}
    s_mov_b32 s{SRD_W+3}, 0x00020000
    s_mov_b32 s{SRD_WS+2}, {WS_SIZE}
    s_mov_b32 s{SRD_WS+3}, 0x00020000
    s_mov_b32 s{SRD_OUT+2}, {OUT_BYTES}
    s_mov_b32 s{SRD_OUT+3}, 0x00020000
    s_mov_b32 s{SRD_U+2}, {X_BYTES}
    s_mov_b32 s{SRD_U+3}, 0x00020000
    s_mov_b32 s{SRD_WO+2}, {WO_BYTES}
    s_mov_b32 s{SRD_WO+3}, 0x00020000
    s_waitcnt lgkmcnt(0)
    s_mov_b32 s{SRD_U}, s4
    s_mov_b32 s{SRD_U+1}, s5
    s_mov_b32 s{SRD_X}, s52
    s_mov_b32 s{SRD_X+1}, s53
    s_mov_b32 s{SRD_W}, s54
    s_mov_b32 s{SRD_W+1}, s55
    s_mov_b32 s{SRD_WO}, s56
    s_mov_b32 s{SRD_WO+1}, s57
    s_mov_b32 s{SRD_OUT}, s58
    s_mov_b32 s{SRD_OUT+1}, s59
    s_mov_b32 s{SRD_WS}, s50
    s_mov_b32 s{SRD_WS+1}, s51
    ''')


def stamp(a, slot, on):
    if not on:
        return
    if on == 3:
        a(f'''
        s_memrealtime s[96:97]
        v_mov_b32 v254, {slot*4}
        s_waitcnt lgkmcnt(0)
        s_and_b32 s96, s96, 0xffffff
        {'s_sub_u32 s96, 0x1000000, s96' if slot in (0, 4, 8) else ''}
        v_mov_b32 v252, s96
        s_mov_b64 s[96:97], exec
        s_mov_b64 exec, 1
        global_atomic_umax v254, v252, s[{sDBG}:{sDBG+1}]
        s_mov_b64 exec, s[96:97]
        ''')
        return
    a(f'''
    {'s_memrealtime' if on == 2 else 's_memtime'} s[96:97]
    s_lshl_b32 s98, s2, 3
    s_add_u32 s98, s98, s3
    s_lshl_b32 s98, s98, 7
    s_add_u32 s98, s98, {WS_STAMP + slot*8}
    v_mov_b32 v254, 0
    s_waitcnt lgkmcnt(0)
    v_mov_b32 v252, s96
    v_mov_b32 v253, s97
    s_mov_b64 s[96:97], exec
    s_mov_b64 exec, 1
    buffer_store_dwordx2 v[252:253], v254, s[{SRD_WS}:{SRD_WS+3}], s98 offen
    s_mov_b64 exec, s[96:97]
    ''')


def dma(srd, vaddr, soff, off=0):
    o = f' offset:{off}' if off else ''
    return f'buffer_load_dwordx4 v{vaddr}, s[{srd}:{srd+3}], {soff} offen{o}{SC if srd == SRD_WS else ""} lds'


def gemm_setup(a):
    a(f'''
    s_and_b32 s62, s{sXCD}, 3
    s_lshl_b32 s62, s62, 2
    s_and_b32 s64, s{sIDX}, 3
    s_add_u32 s62, s62, s64
    s_lshr_b32 s63, s{sXCD}, 2
    s_mul_i32 s63, s63, 6
    s_lshr_b32 s64, s{sIDX}, 2
    s_add_u32 s63, s63, s64
    ''')


def gemm_phase(a, role, fh, ST, first_extra=None, after_first_barrier=None):
    ra = RegAlloc(2, 240)
    nw = 2 if fh == 0 else 3
    vX0, vX1 = ra.get(), ra.get()
    vW = [ra.get() for _ in range(nw)]
    vXa = [ra.get() for _ in range(4)]
    nt = 3 if fh == 0 else 2
    vWa = [[ra.get() for _ in range(nt)] for _ in range(2)]
    t0, t1, t2, t3 = [ra.get() for _ in range(4)]
    fX = [ra.get(4, 4) for _ in range(2)]
    fW = [[ra.get(4, 4) for _ in range(nt)] for _ in range(2)]
    acc = [ra.get(16, 4) for _ in range(nt)]
    sXo, sWo, sOff, sM, sMw = 64, 65, 66, 67, 68
    qk = role == 'qk'
    WB, WS_ = 65536, 20480
    a(f'''
    v_lshrrev_b32 v{t0}, 3, v1
    v_and_b32 v{t1}, 7, v1
    v_lshrrev_b32 v{t2}, 1, v{t0}
    v_xor_b32 v{t1}, v{t1}, v{t2}
    v_mul_u32_u24 v{t0}, 1152, v{t0}
    v_lshl_add_u32 v{vX0}, v{t1}, 4, v{t0}
    v_xor_b32 v{t1}, 4, v{t1}
    v_lshl_add_u32 v{vX1}, v{t1}, 4, v{t0}
    v_add_u32 v{vX1}, {8*1152}, v{vX1}
    s_add_u32 s{sOff}, s62, s63
    s_mul_i32 s69, s{sOff}, 43
    s_lshr_b32 s69, s69, 7
    s_mul_i32 s69, s69, 3
    s_sub_u32 s{sOff}, s{sOff}, s69
    s_mul_i32 s{sOff}, s{sOff}, {ROT}
    s_lshl_b32 s{sXo}, s62, 3
    s_add_u32 s{sXo}, s{sXo}, s3
    s_mul_i32 s{sXo}, s{sXo}, {16*1152}
    s_lshl_b32 s69, s{sOff}, 7
    s_add_u32 s{sXo}, s{sXo}, s69
    s_lshl_b32 s{sM}, s3, 11
    s_add_u32 m0, s{sM}, 0
    s_and_b32 s70, s3, 3
    ''')
    a(dma(SRD_X, vX0, f's{sXo}'))
    a(f'''
    s_add_u32 m0, s{sM}, 1024
    s_mul_i32 s{sMw}, s70, 5120
    ''')
    a(dma(SRD_X, vX1, f's{sXo}'))
    a(f'''
    s_lshl_b32 s69, s{sOff}, 2
    s_add_u32 s69, s69, s70
    s_mul_i32 s69, s69, {16*3456}
    s_mul_i32 s{sWo}, s63, 288
    s_add_u32 s{sWo}, s{sWo}, s69
    s_add_u32 s{sMw}, s{sMw}, {WB + (0 if fh == 0 else 2048)}
    ''')
    for k in range(nw):
        i = k + (0 if fh == 0 else 2)
        a(f'''
        v_add_u32 v{t0}, {64*i}, v1
        v_mul_u32_u24 v{t1}, 205, v{t0}
        v_lshrrev_b32 v{t1}, 12, v{t1}
        v_mul_u32_u24 v{t2}, 20, v{t1}
        v_sub_u32 v{t0}, v{t0}, v{t2}
        v_subrev_u32 v{t2}, 2, v{t0}
        v_max_u32 v{t2}, 16, v{t2}
        v_min_u32 v{t0}, v{t0}, v{t2}
        v_mul_u32_u24 v{t1}, 3456, v{t1}
        v_lshl_add_u32 v{vW[k]}, v{t0}, 4, v{t1}
        s_add_u32 m0, s{sMw}, {1024*k}
        s_nop 0
        ''')
        a(dma(SRD_W, vW[k], f's{sWo}'))
    nld = 2 + nw

    def issue(st):
        sl = st & 3
        pre = f's_add_u32 s{sXo}, s{sXo}, 128\ns_add_u32 s{sWo}, s{sWo}, {64*3456}\n'
        if st in (3, 6):
            pre += f'''s_cmp_eq_u32 s{sOff}, {9-st}
            s_cselect_b32 s69, {9*128}, 0
            s_cselect_b32 s70, {9*64*3456}, 0
            s_sub_u32 s{sXo}, s{sXo}, s69
            s_sub_u32 s{sWo}, s{sWo}, s70
            '''
        L = [pre + f's_add_u32 m0, s{sM}, {sl*16384}\ns_nop 0\n' + dma(SRD_X, vX0, f's{sXo}'),
             f's_add_u32 m0, s{sM}, {sl*16384+1024}\ns_nop 0\n' + dma(SRD_X, vX1, f's{sXo}')]
        for k in range(nw):
            L.append(f's_add_u32 m0, s{sMw}, {sl*WS_+1024*k}\ns_nop 0\n' + dma(SRD_W, vW[k], f's{sWo}'))
        return L
    a(f'''
    v_and_b32 v{t0}, 31, v1
    v_lshrrev_b32 v{t1}, 5, v1
    v_bfe_u32 v{t2}, v1, 1, 3
    v_xor_b32 v{t2}, v{t2}, v{t1}
    s_and_b32 s69, s3, 3
    s_lshl_b32 s69, s69, 12
    v_lshlrev_b32 v{t0}, 7, v{t0}
    v_lshl_add_u32 v{t0}, v{t2}, 4, v{t0}
    v_add_u32 v{vXa[0]}, s69, v{t0}
    v_xor_b32 v{vXa[1]}, 32, v{vXa[0]}
    v_xor_b32 v{vXa[2]}, 64, v{vXa[0]}
    v_xor_b32 v{vXa[3]}, 0x60, v{vXa[0]}
    v_bfe_u32 v{t0}, v1, 2, 2
    v_lshl_add_u32 v{t0}, v{t1}, 3, v{t0}
    v_mul_u32_u24 v{t0}, 320, v{t0}
    v_add_u32 v{t0}, {WB}, v{t0}
    v_and_b32 v{t2}, 3, v1
    v_bfe_u32 v{t3}, v1, 4, 1
    v_lshl_add_u32 v{t1}, v{t2}, 3, v{t0}
    ''')
    if qk and fh == 0:
        a(f'''
        v_mul_u32_u24 v{vWa[0][0]}, 288, v{t3}
        v_add_u32 v{vWa[0][0]}, v{vWa[0][0]}, v{t1}
        v_lshl_add_u32 v{vWa[0][1]}, v{t3}, 5, v{t1}
        v_add_u32 v{vWa[0][1]}, 40, v{vWa[0][1]}
        v_lshl_add_u32 v{t2}, v{t2}, 6, 32
        v_xor_b32 v{t3}, 1, v{t3}
        v_mul_u32_u24 v{t2}, v{t2}, v{t3}
        v_add_u32 v{vWa[0][2]}, v{t2}, v{t1}
        ''')
    elif qk:
        a(f'''
        v_lshl_add_u32 v{t1}, v{t3}, 5, v{t1}
        v_add_u32 v{vWa[0][0]}, 112, v{t1}
        v_add_u32 v{vWa[0][1]}, 184, v{t1}
        ''')
    else:
        a(f'''
        v_lshl_add_u32 v{t2}, v{t3}, 5, v{t1}
        v_add_u32 v{vWa[0][0]}, {128*fh}, v{t2}
        v_add_u32 v{vWa[0][1]}, {128*fh+64}, v{t2}
        ''')
        if fh == 0:
            a(f'''
            v_lshlrev_b32 v{t3}, 5, v{t3}
            v_sub_u32 v{t2}, v{t1}, v{t3}
            v_add_u32 v{vWa[0][2]}, 288, v{t2}
            ''')
    for f in range(nt):
        a(f'v_add_u32 v{vWa[1][f]}, {2*WS_}, v{vWa[0][f]}')
    if first_extra:
        first_extra()
    for st in (1, 2, 3):
        for x in issue(st):
            a(x)

    def reads(st, ks):
        sl = st & 3; b = ks & 1
        L = [f'ds_read_b128 {v(fX[b],4)}, v{vXa[ks]} offset:{sl*16384}']
        for f in range(nt):
            for u in range(2):
                L.append(f'ds_read_b64_tr_b16 {v(fW[b][f]+2*u,2)}, v{vWa[sl>>1][f]} offset:{(sl&1)*WS_+(16*ks+4*u)*320}')
        return L

    def mfmas(st, ks):
        b = ks & 1
        L = []
        for f in range(nt):
            A, B = (fW[b][f], fX[b]) if qk else (fX[b], fW[b][f])
            c = '0' if (st == 0 and ks == 0) else v(acc[f], 16)
            L.append(f'v_mfma_f32_32x32x16_bf16 {v(acc[f],16)}, {v(A,4)}, {v(B,4)}, {c}')
        return L
    nrd = 1 + 2*nt
    a(f's_waitcnt vmcnt({3*nld})\ns_barrier')
    stamp(a, 1, ST)
    if after_first_barrier:
        after_first_barrier()
    for x in reads(0, 0):
        a(x)
    for st in range(9):
        for ks in range(4):
            if ks < 3:
                for x in reads(st, ks+1):
                    a(x)
                a(f's_waitcnt lgkmcnt({nrd})')
                for x in mfmas(st, ks):
                    a(x)
            else:
                if st < 8:
                    left = min(st+3, 8) - (st+1)
                    a(f's_waitcnt vmcnt({left*nld}) lgkmcnt(0)\ns_barrier')
                    for x in reads(st+1, 0):
                        a(x)
                    fill = issue(st+4) if st+4 <= 8 else []
                    for x in interleave(mfmas(st, ks), fill):
                        a(x)
                else:
                    a('s_waitcnt lgkmcnt(0)')
                    for x in mfmas(st, ks):
                        a(x)
    stamp(a, 2, ST)
    ws = f's[{SRD_WS}:{SRD_WS+3}]'
    pk = fX[0]
    assert fX[1] == fX[0] + 4
    a(f'''
    s_and_b32 s69, s3, 3
    s_and_b32 s70, s63, 3
    s_lshl_b32 s70, s70, 3
    s_lshr_b32 s71, s62, 1
    s_mul_i32 s71, s71, {KV_CHUNK}
    s_and_b32 s72, s62, 1
    ''')
    if qk:
        sc = hexf(DH ** -0.5 * LOG2E)
        a(f'''
        s_lshl_b32 s73, s72, 2
        s_add_u32 s73, s73, s69
        s_lshl_b32 s73, s73, 10
        s_add_u32 s73, s73, s71
        s_lshl_b32 s74, s62, 2
        s_add_u32 s74, s74, s69
        s_lshl_b32 s74, s74, 10
        s_add_u32 s74, s74, {WS_QM}
        s_lshl_b32 s75, s72, 9
        s_add_u32 s75, s75, s71
        s_add_u32 s75, s75, {WS_KV + 8192}
        s_lshl_b32 s76, s62, 9
        s_add_u32 s76, s76, {WS_QT}
        s_mov_b32 s78, {KV_HEAD}
        s_cmp_lt_u32 s63, 4
        s_cselect_b32 s73, s74, s73
        s_cselect_b32 s75, s76, s75
        s_cselect_b32 s74, 65536, s78
        s_cselect_b32 s76, 8192, s78
        s_cselect_b32 s77, {sc}, 1.0
        s_mul_i32 s78, s70, s74
        s_add_u32 s73, s73, s78
        v_lshlrev_b32 v{t0}, 4, v1
        s_nop 7
        ''')
        heads = [[0, 7], [1, 2]] if fh == 0 else [[3, 4], [5, 6]]
        for f in range(2):
            for hb in range(2):
                r = acc[f] + 8*hb
                d = pk + 4*hb
                for j in range(8):
                    a(f'v_mul_f32 v{r+j}, s77, v{r+j}')
                for j in range(4):
                    a(f'v_cvt_pk_bf16_f32 v{d+j}, v{r+2*j}, v{r+2*j+1}')
                a(f's_mul_i32 s78, s74, {heads[f][hb]}\ns_add_u32 s78, s78, s73')
                a(f'buffer_store_dwordx4 {v(d,4)}, v{t0}, {ws}, s78 offen{SC}')
        if fh == 0:
            r = acc[2]
            a(f'''
            s_lshr_b32 s78, s69, 1
            s_lshl_b32 s78, s78, 8
            s_add_u32 s75, s75, s78
            s_and_b32 s78, s69, 1
            s_lshl_b32 s78, s78, 2
            s_add_u32 s75, s75, s78
            s_mul_i32 s78, s70, s76
            s_add_u32 s75, s75, s78
            s_lshl_b32 s78, s76, 1
            v_lshrrev_b32 v{t1}, 5, v1
            v_and_b32 v{t2}, 31, v1
            v_mul_lo_u32 v{t1}, v{t1}, s78
            v_lshl_add_u32 v{t1}, v{t2}, 3, v{t1}
            s_mul_i32 s78, s76, 3
            ''')
            for j in range(8):
                a(f'v_mul_f32 v{r+j}, s77, v{r+j}')
            for e in range(4):
                a(f'v_cvt_pk_bf16_f32 v{r+8+e}, v{r+2*e}, v{r+2*e+1}')
            for e in range(4):
                a(f'buffer_store_dword v{r+8+e}, v{t1}, {ws}, s75 offen{SC}')
                if e < 3:
                    a(f's_add_u32 s75, s75, {"s76" if e != 1 else "s78"}')
    else:
        a(f'''
        s_lshl_b32 s73, s72, 2
        s_add_u32 s73, s73, s69
        s_mul_i32 s73, s73, 1216
        s_add_u32 s73, s73, s71
        s_mul_i32 s74, s70, {KV_HEAD}
        s_add_u32 s73, s73, s74
        s_add_u32 s73, s73, {WS_KV + 9216}
        s_mov_b32 s74, {KV_HEAD - 18*16}
        v_and_b32 v{t0}, 31, v1
        v_lshrrev_b32 v{t1}, 5, v1
        v_mul_u32_u24 v{t1}, 304, v{t1}
        s_nop 3
        ''')
        tiles = [2*fh, 2*fh+1] + ([4] if fh == 0 else [])
        for fi, f in enumerate(tiles):
            va = vXa[fi]
            a(f'''
            v_add_u32 v{t2}, {32*f}, v{t0}
            v_mul_u32_u24 v{t3}, 57, v{t2}
            v_lshrrev_b32 v{t3}, 10, v{t3}
            v_mul_lo_u32 v{t3}, v{t3}, s74
            v_lshl_add_u32 v{t2}, v{t2}, 4, v{t1}
            v_add_u32 v{va}, v{t2}, v{t3}
            ''')
            if f == 4:
                a(f'''
                s_mov_b32 s75, {KV_HEAD}
                v_subrev_u32 v{t2}, 16, v{t0}
                v_mul_lo_u32 v{t2}, v{t2}, s75
                v_add_u32 v{t2}, v{t2}, v{t1}
                v_add_u32 v{t2}, {18*16}, v{t2}
                v_cmp_le_u32 s[76:77], 16, v{t0}
                v_cmp_le_u32 s[78:79], 24, v{t0}
                v_mov_b32 v{t3}, {OOB}
                v_cndmask_b32 v{va}, v{va}, v{t2}, s[76:77]
                v_cndmask_b32 v{va}, v{va}, v{t3}, s[78:79]
                v_mov_b32 v{t3}, 0x3f803f80
                ''')
            for m in range(2):
                r = acc[fi] + 8*m
                d = pk + 4*m
                for j in range(4):
                    a(f'v_cvt_pk_bf16_f32 v{d+j}, v{r+2*j}, v{r+2*j+1}')
                if f == 4:
                    for j in range(4):
                        a(f'v_cndmask_b32 v{d+j}, v{d+j}, v{t3}, s[76:77]')
                a(f'buffer_store_dwordx4 {v(d,4)}, v{va}, {ws}, s73 offen offset:{608*m}{SC}')
    stamp(a, 3, ST)


def attn_setup(a):
    a(f'''
    s_lshl_b32 s62, s{sXCD}, 2
    s_lshr_b32 s63, s{sIDX}, 3
    s_add_u32 s62, s62, s63
    s_and_b32 s63, s{sIDX}, 7
    ''')


QSTAGE = KV_HEAD


class AttnRegs:
    def __init__(self):
        ra = RegAlloc(2, 250)
        self.vKa, self.vTa, self.vVa = ra.get(), ra.get(), ra.get()
        self.t = [ra.get() for _ in range(7)]
        self.Qm = [ra.get(4, 4) for _ in range(2)]
        self.Qt = [[ra.get(2, 2) for _ in range(4)] for _ in range(2)]
        self.Km = ra.get(4, 4)
        self.V0 = ra.get(4, 4)
        self.V1 = ra.get(4, 4)
        self.Kt = ra.get(2, 2)
        self.T = ra.get(4, 2)
        self.P = ra.get(8, 4)
        self.S = [ra.get(16, 4), ra.get(16, 4)]
        self.O = [ra.get(16, 4), ra.get(16, 4)]
        self.NM = [ra.get(16, 4), ra.get(16, 4)]
        self.hi = ra.hi


def attn_phase(a, R, ST):
    t = R.t
    ws = f's[{SRD_WS}:{SRD_WS+3}]'
    sC, sFLAG = 67, 68
    a(f'''
    v_lshlrev_b32 v{R.vKa}, 4, v1
    s_lshl_b32 s64, s3, 11
    s_add_u32 s64, s64, {QSTAGE}
    v_add_u32 v{t[1]}, s64, v{R.vKa}
    v_and_b32 v{t[0]}, 31, v1
    s_lshl_b32 s64, s3, 8
    s_add_u32 s64, s64, {QSTAGE + 8192}
    v_lshl_add_u32 v{t[2]}, v{t[0]}, 3, s64
    ds_read_b128 {v(R.Qm[0],4)}, v{t[1]}
    ds_read_b128 {v(R.Qm[1],4)}, v{t[1]} offset:1024
    ds_read_b64 {v(R.T,2)}, v{t[2]}
    v_lshlrev_b32 v{R.vTa}, 3, v1
    v_add_u32 v{R.vTa}, 8192, v{R.vTa}
    v_lshrrev_b32 v{t[1]}, 5, v1
    v_mul_u32_u24 v{t[1]}, 304, v{t[1]}
    v_cmp_lt_u32 s[72:73], 18, v{t[0]}
    v_cmp_gt_u32 s[74:75], 32, v1
    v_lshl_add_u32 v{R.vVa}, v{t[0]}, 4, v{t[1]}
    v_add_u32 v{R.vVa}, 9216, v{R.vVa}
    v_mov_b32 v{t[2]}, 0x100000
    v_cndmask_b32 v{R.vVa}, v{R.vVa}, v{t[2]}, s[72:73]
    s_mov_b32 s{sFLAG}, 0
    ''')
    for z in range(2):
        for j in range(16):
            a(f'v_mov_b32 v{R.NM[z]+j}, 0')
    a('s_waitcnt lgkmcnt(0)')
    for z in range(2):
        q = R.T + z
        a(f'''
        v_cndmask_b32 v{R.Qt[z][0]}, 0, v{q}, s[74:75]
        v_mov_b32 v{R.Qt[z][0]+1}, 0
        v_mov_b32 v{R.Qt[z][1]}, 0
        v_cndmask_b32 v{R.Qt[z][1]+1}, 0, v{q}, s[74:75]
        v_cndmask_b32 v{R.Qt[z][2]}, v{q}, 0, s[74:75]
        v_mov_b32 v{R.Qt[z][2]+1}, 0
        v_mov_b32 v{R.Qt[z][3]}, 0
        v_cndmask_b32 v{R.Qt[z][3]+1}, v{q}, 0, s[74:75]
        ''')
    stamp(a, 5, ST)
    Lrun, Lloop, Lredo, Ldone = a.newlabel('arun'), a.newlabel('aloop'), a.newlabel('aredo'), a.newlabel('adone')
    a.label(Lrun)

    def ldK(tau): return f'ds_read_b128 {v(R.Km,4)}, v{R.vKa} offset:{(tau>>3)*KV_CHUNK + (tau&7)*1024}'
    def ldT(g): return f'ds_read_b64 {v(R.Kt,2)}, v{R.vTa} offset:{(g>>1)*KV_CHUNK + (g&1)*512}'
    def ldV(tau, m): return f'ds_read_b128 {v(R.V1 if m else R.V0,4)}, v{R.vVa} offset:{(tau>>3)*KV_CHUNK + (tau&7)*1216 + m*608}'
    def mA(z): return f'v_mfma_f32_32x32x16_bf16 {v(R.S[z],16)}, {v(R.Km,4)}, {v(R.Qm[z],4)}, {v(R.NM[z],16)}'
    def mB(tau, z): return f'v_mfma_f32_32x32x8_bf16 {v(R.S[z],16)}, {v(R.Kt,2)}, {v(R.Qt[z][tau&3],2)}, {v(R.S[z],16)}'
    def mV(m, z): return f'v_mfma_f32_32x32x16_bf16 {v(R.O[z],16)}, {v(R.V1 if m else R.V0,4)}, {v(R.P+4*m,4)}, {v(R.O[z],16)}'
    a(ldK(0)); a(ldT(0)); a(ldV(0, 0))
    for z in range(2):
        for j in range(16):
            a(f'v_mov_b32 v{R.O[z]+j}, 0')
    for j in range(4):
        a(f'v_mov_b32 v{R.V1+j}, 0\nv_mov_b32 v{R.P+4+j}, 0')
    a(f'v_mov_b32 v{R.T+2}, 0\nv_mov_b32 v{R.T+3}, 0\ns_mov_b32 s{sC}, 0')
    a('s_waitcnt lgkmcnt(1)')
    a(mA(0)); a(mB(0, 0))
    a('s_nop 7\ns_nop 1')
    a('.p2align 6')
    a.label(Lloop)
    q = ['V0']

    def wait(name):
        if name in q:
            i = q.index(name)
            n = len(q) - 1 - i
            del q[:i+1]
            a(f's_waitcnt lgkmcnt({n})')
    for sg in range(16):
        tau, z = sg >> 1, sg & 1
        tn, zn = (sg+1) >> 1, (sg+1) & 1
        S = R.S[z]; Tt = R.T; P = R.P
        def e(i): a(f'v_exp_f32 v{Tt+(i&3)}, v{S+i}')
        def c(i): a(f'v_cvt_pk_bf16_f32 v{P+i}, v{Tt+((2*i)&3)}, v{Tt+((2*i)&3)+1}')
        a(mA(zn))
        c(7); e(0)
        if zn == 1:
            a(ldK(tn+1)); q.append('K')
        e(1)
        if sg == 10:
            Lnb = a.newlabel('nobar')
            a(f'''
            s_add_u32 s69, s{sC}, s{sFLAG}
            s_cmp_lg_u32 s69, 1
            s_cbranch_scc1 {Lnb}
            s_waitcnt vmcnt(0)
            s_barrier
            ''')
            a.label(Lnb)
        e(2); c(0); e(3)
        if zn == 0: wait('T')
        a(mB(tn, zn))
        c(1); e(4)
        if zn == 1 and (tn & 3) == 3:
            a(ldT((tn+1) >> 2)); q.append('T')
        e(5); e(6); c(2); e(7)
        if z == 1: wait('V1')
        a(mV(1, 1-z))
        c(3); e(8)
        if z == 0:
            a(ldV(tau, 1)); q.append('V1')
        e(9); e(10); c(4); e(11)
        if z == 0: wait('V0')
        a(mV(0, z))
        c(5); e(12)
        if z == 1:
            a(ldV(tau+1, 0)); q.append('V0')
        e(13)
        if sg == 15:
            a(f's_add_u32 s{sC}, s{sC}, 1')
        e(14)
        if sg == 15:
            a(f's_cmp_lt_u32 s{sC}, 8')
        c(6); e(15)
        if z == 0: wait('K')
    assert q == ['V0'], q
    a(f'''
    v_add_u32 v{R.vKa}, {KV_CHUNK}, v{R.vKa}
    v_add_u32 v{R.vTa}, {KV_CHUNK}, v{R.vTa}
    v_add_u32 v{R.vVa}, {KV_CHUNK}, v{R.vVa}
    s_cbranch_scc1 {Lloop}
    v_cvt_pk_bf16_f32 v{R.P+7}, v{R.T+2}, v{R.T+3}
    s_waitcnt lgkmcnt(0)
    v_subrev_u32 v{R.vKa}, {8*KV_CHUNK}, v{R.vKa}
    ''')
    a(mV(1, 1))
    a(f'''
    v_subrev_u32 v{R.vTa}, {8*KV_CHUNK}, v{R.vTa}
    v_subrev_u32 v{R.vVa}, {8*KV_CHUNK}, v{R.vVa}
    s_mov_b32 s69, {hexf(2.0**-64)}
    s_mov_b32 s76, {hexf(2.0**64)}
    s_mov_b32 s77, {hexf(2.0**126)}
    s_mov_b64 s[78:79], 0
    ''')
    stamp(a, 6, ST)
    for z in range(2):
        O = R.O[z]; l = t[z]
        a(f'''
        v_mov_b32 v{l}, v{O+10}
        v_mov_b32 v{t[4]}, v{O+10}
        v_max3_f32 v{t[2]}, abs(v{O}), abs(v{O+1}), abs(v{O+2})
        v_max3_f32 v{t[3]}, abs(v{O+3}), abs(v{O+4}), abs(v{O+5})
        v_permlane32_swap_b32 v{l}, v{t[4]}
        v_max3_f32 v{t[2]}, v{t[2]}, abs(v{O+6}), abs(v{O+7})
        v_max3_f32 v{t[3]}, v{t[3]}, abs(v{O+8}), abs(v{O+9})
        v_max_f32 v{t[2]}, v{t[2]}, v{t[3]}
        v_cmp_nle_f32 s[70:71], s69, v{l}
        v_cmp_nge_f32 s[72:73], s76, v{l}
        v_cmp_nge_f32 vcc, s77, v{t[2]}
        s_or_b64 s[78:79], s[78:79], s[70:71]
        s_or_b64 s[78:79], s[78:79], s[72:73]
        s_or_b64 s[78:79], s[78:79], vcc
        ''')
    a(f'''
    s_cmp_lg_u32 s{sFLAG}, 0
    s_cbranch_scc1 {Ldone}
    s_cmp_lg_u64 s[78:79], 0
    s_cbranch_scc1 {Lredo}
    ''')
    a.label(Ldone)
    a(f'''
    v_rcp_f32 v{t[0]}, v{t[0]}
    v_rcp_f32 v{t[1]}, v{t[1]}
    s_lshl_b32 s64, s63, 4
    s_lshl_b32 s65, s3, 2
    s_add_u32 s64, s64, s65
    s_mul_i32 s64, s64, 18432
    s_add_u32 s64, s64, {WS_O}
    s_lshl_b32 s65, s62, 9
    s_add_u32 s65, s65, s64
    s_lshr_b32 s66, s62, 2
    s_lshl_b32 s66, s66, 8
    s_add_u32 s64, s64, s66
    s_and_b32 s66, s62, 3
    s_lshl_b32 s66, s66, 2
    s_add_u32 s64, s64, s66
    s_add_u32 s64, s64, 16384
    v_bfe_u32 v{t[4]}, v1, 4, 1
    v_and_b32 v{t[2]}, 15, v1
    v_mul_u32_u24 v{t[4]}, 18432, v{t[4]}
    v_lshl_add_u32 v{t[4]}, v{t[2]}, 4, v{t[4]}
    v_lshrrev_b32 v{t[2]}, 5, v1
    v_lshl_add_u32 v{t[2]}, v{t[2]}, 8, v{t[4]}
    v_mov_b32 v{t[3]}, {OOB}
    v_cndmask_b32 v{t[4]}, v{t[3]}, v{t[4]}, s[74:75]
    ''')
    for z in range(2):
        O = R.O[z]; d = R.S[z]
        for j in range(10):
            a(f'v_mul_f32 v{O+j}, v{t[z]}, v{O+j}')
        for j in range(5):
            a(f'v_cvt_pk_bf16_f32 v{d+j}, v{O+2*j}, v{O+2*j+1}')
        a(f'''
        buffer_store_dwordx4 {v(d,4)}, v{t[2]}, {ws}, s65 offen{SC}
        buffer_store_dword v{d+4}, v{t[4]}, {ws}, s64 offen{SC}
        ''')
        if z == 0:
            a(f's_add_u32 s65, s65, {2*18432}\ns_add_u32 s64, s64, {2*18432}')
    stamp(a, 7, ST)

    def redo():
        Lm = a.newlabel('amax')
        a.label(Lredo)
        a(f'''
        v_mov_b32 v{t[0]}, 0xff800000
        v_mov_b32 v{t[1]}, 0xff800000
        s_mov_b32 s{sC}, 0
        ''')
        a.label(Lm)
        for tau in range(8):
            a(ldK(tau))
            if (tau & 3) == 0:
                a(ldT(tau >> 2))
            a('s_waitcnt lgkmcnt(0)')
            for z in range(2):
                S = R.S[z]
                a(f'v_mfma_f32_32x32x16_bf16 {v(S,16)}, {v(R.Km,4)}, {v(R.Qm[z],4)}, 0')
                a(f'v_mfma_f32_32x32x8_bf16 {v(S,16)}, {v(R.Kt,2)}, {v(R.Qt[z][tau&3],2)}, {v(S,16)}')
            a('s_nop 11')
            for z in range(2):
                S = R.S[z]
                for j in range(8):
                    a(f'v_max3_f32 v{t[z]}, v{t[z]}, v{S+2*j}, v{S+2*j+1}')
        a(f'''
        v_add_u32 v{R.vKa}, {KV_CHUNK}, v{R.vKa}
        v_add_u32 v{R.vTa}, {KV_CHUNK}, v{R.vTa}
        s_add_u32 s{sC}, s{sC}, 1
        s_cmp_lt_u32 s{sC}, 8
        s_cbranch_scc1 {Lm}
        v_mov_b32 v{t[2]}, v{t[0]}
        v_mov_b32 v{t[3]}, v{t[1]}
        v_subrev_u32 v{R.vKa}, {8*KV_CHUNK}, v{R.vKa}
        v_subrev_u32 v{R.vTa}, {8*KV_CHUNK}, v{R.vTa}
        v_permlane32_swap_b32 v{t[0]}, v{t[2]}
        v_permlane32_swap_b32 v{t[1]}, v{t[3]}
        s_mov_b32 s{sFLAG}, 16
        v_max_f32 v{t[0]}, v{t[0]}, v{t[2]}
        v_max_f32 v{t[1]}, v{t[1]}, v{t[3]}
        ''')
        for z in range(2):
            for j in range(16):
                a(f'v_sub_f32 v{R.NM[z]+j}, 0, v{t[z]}')
        a(f's_branch {Lrun}')
    return redo


def kv_first(a, vL):
    a(f'''
    s_and_b32 s64, s3, 1
    s_lshl_b32 s65, s62, 16
    s_lshl_b32 s66, s63, 13
    s_add_u32 s65, s65, s66
    s_lshl_b32 s66, s64, 12
    s_add_u32 s65, s65, s66
    s_add_u32 m0, s66, {QSTAGE}
    s_add_u32 s65, s65, {WS_QM}
    s_mul_i32 s67, s62, {KV_HEAD}
    s_add_u32 s67, s67, s66
    s_add_u32 s67, s67, {WS_KV}
    ''')
    for i in range(4):
        a(dma(SRD_WS, vL, 's65', 1024*i))
    a(f'''
    s_lshl_b32 s65, s62, 13
    s_lshl_b32 s68, s63, 10
    s_add_u32 s65, s65, s68
    s_mov_b32 m0, {QSTAGE + 8192}
    s_add_u32 s65, s65, {WS_QT}
    ''')
    a(dma(SRD_WS, vL, 's65'))
    for k in range(5):
        a(f's_add_u32 m0, s66, {8192*k}')
        a(f's_add_u32 s67, s67, 8192' if k else 's_nop 0')
        for i in range(4):
            a(dma(SRD_WS, vL, 's67', 1024*i))


def kv_rest(a, vL):
    a(f'''
    s_and_b32 s66, s3, 3
    s_lshl_b32 s66, s66, 12
    s_add_u32 s66, s66, 40960
    s_mul_i32 s67, s62, {KV_HEAD}
    s_add_u32 s67, s67, s66
    s_add_u32 s67, s67, {WS_KV}
    ''')
    L = a.newlabel('kvlast')
    for k in range(7):
        if k == 6:
            a(f's_cmp_eq_u32 s3, 7\ns_cbranch_scc1 {L}')
        a(f's_add_u32 m0, s66, {16384*k}')
        a(f's_add_u32 s67, s67, 16384' if k else 's_nop 0')
        for i in range(4):
            a(dma(SRD_WS, vL, 's67', 1024*i))
    a.label(L)


XCH = 110592


class OutRegs:
    def __init__(self):
        ra = RegAlloc(2, 250)
        self.t = [ra.get() for _ in range(6)]
        self.vM = [ra.get() for _ in range(3)]
        self.vT = [ra.get() for _ in range(3)]
        self.vAe, self.vAo = ra.get(), ra.get()
        self.Of = [ra.get(4, 4) for _ in range(9)]
        self.fA = [[ra.get(4, 4) for _ in range(6)] for _ in range(2)]
        self.acc = [ra.get(4, 4) for _ in range(6)]


def out_setup(a):
    a(f'''
    s_lshl_b32 s62, s{sXCD}, 2
    s_and_b32 s63, s{sIDX}, 3
    s_add_u32 s62, s62, s63
    s_lshr_b32 s63, s{sIDX}, 2
    ''')


def out_wo_addr(a, R):
    t = R.t
    for i in range(3):
        a(f'''
        v_add_u32 v{t[0]}, {64*i}, v1
        v_mul_u32_u24 v{t[1]}, 171, v{t[0]}
        v_lshrrev_b32 v{t[1]}, 11, v{t[1]}
        v_mul_u32_u24 v{t[2]}, 12, v{t[1]}
        v_sub_u32 v{t[0]}, v{t[0]}, v{t[2]}
        v_lshrrev_b32 v{t[2]}, 3, v{t[1]}
        v_lshlrev_b32 v{t[3]}, 1, v{t[2]}
        v_xor_b32 v{t[0]}, v{t[0]}, v{t[3]}
        v_lshlrev_b32 v{t[0]}, 4, v{t[0]}
        v_and_b32 v{t[3]}, 3, v{t[1]}
        v_bfe_u32 v{t[4]}, v{t[1]}, 2, 1
        v_lshl_add_u32 v{t[3]}, v{t[4]}, 3, v{t[3]}
        v_lshl_add_u32 v{t[3]}, v{t[2]}, 2, v{t[3]}
        v_mul_u32_u24 v{t[3]}, 1152, v{t[3]}
        v_add_u32 v{R.vM[i]}, v{t[3]}, v{t[0]}
        v_lshrrev_b32 v{t[3]}, 1, v{t[1]}
        v_mul_u32_u24 v{t[3]}, 18, v{t[3]}
        v_and_b32 v{t[4]}, 1, v{t[1]}
        v_add3_u32 v{t[3]}, v{t[3]}, v{t[4]}, 16
        v_mul_u32_u24 v{t[3]}, 1152, v{t[3]}
        v_add_u32 v{R.vT[i]}, v{t[3]}, v{t[0]}
        ''')


def out_issue_wo(a, R):
    a(f'''
    s_and_b32 s67, s3, 3
    s_mul_i32 s64, s63, 192
    s_mul_i32 s65, s67, {18*1152}
    s_add_u32 s65, s65, s64
    s_mul_i32 s66, s67, 3072
    ''')
    for k in range(8):
        for i in range(3):
            a(f's_add_u32 m0, s66, {k*4*3072 + i*1024}')
            a('s_nop 0' if (i or not k) else f's_add_u32 s65, s65, {4*18*1152}')
            a(dma(SRD_WO, R.vM[i], 's65'))
    a(f'''
    s_mul_i32 s65, s67, {8*18*1152}
    s_add_u32 s65, s65, s64
    ''')
    for i in range(3):
        a(f's_add_u32 m0, s66, {32*3072 + i*1024}\ns_nop 0')
        a(dma(SRD_WO, R.vT[i], 's65'))


def out_issue_o(a, R):
    t = R.t
    ws = f's[{SRD_WS}:{SRD_WS+3}]'
    a(f'''
    s_lshl_b32 s64, s62, 2
    s_and_b32 s65, s3, 3
    s_add_u32 s64, s64, s65
    s_mul_i32 s64, s64, 18432
    s_lshr_b32 s65, s3, 2
    s_mul_i32 s65, s65, 9216
    s_add_u32 s64, s64, s65
    s_add_u32 s64, s64, {WS_O}
    s_add_u32 s65, s64, 4096
    s_add_u32 s66, s64, 8192
    v_lshlrev_b32 v{t[5]}, 4, v1
    ''')
    for k in range(9):
        a(f'buffer_load_dwordx4 {v(R.Of[k],4)}, v{t[5]}, {ws}, s{64 + k//4} offen offset:{(k%4)*1024}{SC}')


def out_phase(a, R, ST):
    t = R.t
    a(f'''
    v_lshrrev_b32 v{t[0]}, 4, v1
    v_bfe_u32 v{t[1]}, v1, 2, 2
    v_lshl_add_u32 v{t[1]}, v{t[0]}, 3, v{t[1]}
    v_mul_u32_u24 v{t[1]}, 192, v{t[1]}
    v_and_b32 v{t[2]}, 3, v1
    v_lshl_add_u32 v{t[1]}, v{t[2]}, 3, v{t[1]}
    s_lshr_b32 s67, s3, 2
    s_mul_i32 s67, s67, 55296
    v_add_u32 v{t[1]}, s67, v{t[1]}
    v_and_b32 v{t[2]}, 1, v{t[0]}
    v_lshlrev_b32 v{t[2]}, 5, v{t[2]}
    v_add_u32 v{R.vAe}, v{t[1]}, v{t[2]}
    v_sub_u32 v{R.vAo}, v{t[1]}, v{t[2]}
    s_waitcnt vmcnt(9)
    s_barrier
    ''')
    stamp(a, 9, ST)

    def reads(k):
        L = []
        for f in range(6):
            for u in range(2):
                L.append(f'ds_read_b64_tr_b16 {v(R.fA[k&1][f]+2*u,2)}, v{R.vAo if f&1 else R.vAe} offset:{k*6144+u*768+f*32}')
        return L
    for x in reads(0):
        a(x)
    for k in range(9):
        mf = [f'v_mfma_f32_16x16x32_bf16 {v(R.acc[f],4)}, {v(R.fA[k&1][f],4)}, {v(R.Of[k],4)}, {v(R.acc[f],4) if k else 0}' for f in range(6)]
        a(f's_waitcnt vmcnt({8-k}) lgkmcnt(0)')
        for x in interleave(mf, reads(k+1) if k < 8 else []):
            a(x)
    stamp(a, 10, ST)
    out = f's[{SRD_OUT}:{SRD_OUT+3}]'
    L1, Lj = a.newlabel('kh1'), a.newlabel('khj')
    a(f'''
    s_mul_i32 s64, s3, 3072
    s_xor_b32 s65, s3, 4
    s_mul_i32 s65, s65, 3072
    v_add_u32 v{t[0]}, {XCH}, v{t[5]}
    v_add_u32 v{t[1]}, s65, v{t[0]}
    v_add_u32 v{t[0]}, s64, v{t[0]}
    s_lshl_b32 s64, s62, 2
    s_and_b32 s65, s3, 3
    s_add_u32 s64, s64, s65
    s_mul_i32 s64, s64, {16*2304}
    s_mul_i32 s65, s63, 192
    s_add_u32 s64, s64, s65
    s_add_u32 s64, s64, 1152
    v_and_b32 v{t[2]}, 15, v1
    v_mul_u32_u24 v{t[2]}, 2304, v{t[2]}
    v_lshrrev_b32 v{t[3]}, 4, v1
    v_lshl_add_u32 v{t[2]}, v{t[3]}, 3, v{t[2]}
    s_cmp_gt_u32 s3, 3
    s_cbranch_scc1 {L1}
    ''')
    for kh in range(2):
        if kh == 1:
            a.label(L1)
        keep = [3*kh + i for i in range(3)]
        send = [3*(1-kh) + i for i in range(3)]
        for i, f in enumerate(send):
            a(f'ds_write_b128 v{t[0]}, {v(R.acc[f],4)} offset:{i*1024}')
        a('s_waitcnt lgkmcnt(0)\ns_barrier')
        for i in range(3):
            a(f'ds_read_b128 {v(R.fA[0][i],4)}, v{t[1]} offset:{i*1024}')
        for i, f in enumerate(keep):
            a(f's_waitcnt lgkmcnt({2-i})')
            for j in range(4):
                a(f'v_add_f32 v{R.acc[f]+j}, v{R.acc[f]+j}, v{R.fA[0][i]+j}')
            a(f'v_cvt_pk_bf16_f32 v{R.fA[1][i]}, v{R.acc[f]}, v{R.acc[f]+1}')
            a(f'v_cvt_pk_bf16_f32 v{R.fA[1][i]+1}, v{R.acc[f]+2}, v{R.acc[f]+3}')
            a(f'buffer_store_dwordx2 {v(R.fA[1][i],2)}, v{t[2]}, {out}, s64 offen offset:{32*f}')
        if kh == 0:
            a(f's_branch {Lj}')
    a.label(Lj)
    stamp(a, 11, ST)
```

```python
import math
from asmlib import *
from layout import *
from phases import *

KROW = 272
KG_LDS = 59 * KROW
EXPS = list(range(8)) + [256, 258, 260, 262, 264] + [512, 516, 520, 768, 772, 776] + \
       [1024, 1032, 1280, 1288, 1536, 1544, 1792, 1800]
assert len(EXPS) == 27
WANT = [list(range(8)) + [1024, 1024, 1032, 1280, 1280, 1288, 1536, 1544],
        [256, 256, 258, 260, 260, 260, 262, 264] + [512, 516, 520, 768, 772, 776, 1792, 1800]]


def rowmap():
    m = [0]*32
    for h in range(2):
        for r in range(16):
            m[(r & 3) + 8*(r >> 2) + 4*h] = EXPS.index(WANT[h][r])
    return m


def cmul(d, x, y):
    return [f'v_pk_mul_f32 {v(d,2)}, {v(x,2)}, {v(y,2)} op_sel:[0,0] op_sel_hi:[1,0]',
            f'v_pk_fma_f32 {v(d,2)}, {v(x,2)}, {v(y,2)}, {v(d,2)} op_sel:[1,1,0] op_sel_hi:[0,1,1] neg_lo:[1,0,0]']


def kgen_setup(a, R):
    t = R.t
    rm = rowmap()
    for i in range(8):
        w = sum(rm[4*i+j] << (8*j) for j in range(4))
        a(f's_mov_b32 s{70+i}, 0x{w:08x}')
    a(f'''
    v_bfe_u32 v{t[0]}, v1, 2, 3
    v_mov_b32 v{t[1]}, s70
    ''')
    for i in range(1, 8):
        a(f'''
        v_cmp_eq_u32 s[78:79], {i}, v{t[0]}
        v_mov_b32 v{t[2]}, s{70+i}
        s_nop 0
        v_cndmask_b32 v{t[1]}, v{t[1]}, v{t[2]}, s[78:79]
        ''')
    a(f'''
    v_and_b32 v{t[0]}, 3, v1
    v_lshlrev_b32 v{t[0]}, 3, v{t[0]}
    v_bfe_u32 v{t[1]}, v{t[1]}, v{t[0]}, 8
    v_mul_u32_u24 v{t[1]}, {KROW}, v{t[1]}
    v_lshrrev_b32 v{t[2]}, 5, v1
    s_mul_i32 s66, s3, {KG_LDS}
    v_lshl_add_u32 v{t[0]}, v{t[2]}, 4, s66
    v_add_u32 v{R.vA}, v{t[0]}, v{t[1]}
    v_and_b32 v{t[1]}, 31, v1
    v_mul_u32_u24 v{t[3]}, {KROW}, v{t[1]}
    v_add_u32 v{R.vB}, v{t[0]}, v{t[3]}
    v_add_u32 v{R.vB}, {27*KROW}, v{R.vB}
    v_cmp_gt_u32 s[70:71], 32, v1
    v_and_b32 v{t[3]}, 1, v1
    v_cmp_eq_u32 s[72:73], 1, v{t[3]}
    v_mov_b32 v{t[3]}, 0x01000504
    v_mov_b32 v{t[4]}, 0x05040504
    v_cndmask_b32 v{R.sel3}, v{t[3]}, v{t[4]}, s[72:73]
    v_mov_b32 v{t[3]}, 0x03020302
    v_cndmask_b32 v{R.sel1}, v{t[3]}, v{R.sel3}, s[70:71]
    v_mov_b32 v{t[3]}, 0x01000302
    v_mov_b32 v{t[4]}, 0x01000100
    v_cndmask_b32 v{R.sel2}, v{t[3]}, v{t[4]}, s[70:71]
    v_lshlrev_b32 v{t[1]}, 4, v{t[1]}
    v_lshlrev_b32 v{t[2]}, 9, v{t[2]}
    v_sub_u32 v{t[1]}, {4096-16}, v{t[1]}
    v_sub_u32 v{R.vS0}, v{t[1]}, v{t[2]}
    v_lshlrev_b32 v{t[2]}, 1, v{t[2]}
    v_subrev_u32 v{t[1]}, 2560, v{t[1]}
    v_add_u32 v{R.vS1}, v{t[1]}, v{t[2]}
    v_lshlrev_b32 v{R.vP}, 2, v1
    v_cmp_eq_u32 s[74:75], 0, v1
    v_mov_b32 v{t[3]}, {OOB}
    v_mov_b32 v{t[4]}, 4096
    v_cndmask_b32 v{R.vZ}, v{t[3]}, v{t[4]}, s[74:75]
    v_subrev_u32 v{R.vS3}, 3072, v{R.vS0}
    ''')


class KgenRegs:
    def __init__(self):
        ra = RegAlloc(2, 250)
        self.t = [ra.get() for _ in range(6)]
        self.vA, self.vB, self.sel1, self.sel2, self.sel3 = [ra.get() for _ in range(5)]
        self.vS0, self.vS1, self.vS3, self.vP, self.vZ = [ra.get() for _ in range(5)]
        self.par = [ra.get() for _ in range(6)]
        self.ldt, self.dsk, self.dt = ra.get(), ra.get(), ra.get()
        self.z1, self.z8, self.z16, self.z256 = [ra.get(2, 2) for _ in range(4)]
        self.er, self.ar = ra.get(), ra.get()
        self.x = [ra.get(2, 2) for _ in range(4)]
        self.w = [ra.get(2, 2) for _ in range(9)]
        self.c = [ra.get(2, 2) for _ in range(4)]
        self.pk = [ra.get() for _ in range(4)]
        self.fA = [ra.get(4, 4) for _ in range(8)]
        self.fB = [ra.get(4, 4) for _ in range(8)]
        self.acc = ra.get(16, 4)
        self.o = ra.get(16, 4)
        self.ut = [ra.get() for _ in range(5)]
        self.ud = ra.get(32, 4)


def kgen_load(a, R, sCH):
    t = R.t
    a(f'''
    s_lshl_b32 s67, s{sCH}, 8
    v_add_u32 v{t[0]}, s67, v{R.vP}
    s_lshl_b32 s67, s{sCH}, 1
    v_mov_b32 v{t[1]}, s67
    ''')
    for i in range(6):
        a(f'global_load_dword v{R.par[i]}, v{t[0]}, s[{sPAR+2*i}:{sPAR+2*i+1}]')
    a(f'global_load_ushort v{R.ldt}, v{t[1]}, s[{sPAR+12}:{sPAR+13}]')
    a(f'global_load_ushort v{R.dsk}, v{t[1]}, s[{sPAR+14}:{sPAR+15}]')


def kgen_compute(a, R, sCH, nwait):
    t = R.t
    ws = f's[{SRD_WS}:{SRD_WS+3}]'
    l2hi = f32bits(LOG2E)
    import struct
    l2hi_f = struct.unpack('<f', struct.pack('<I', l2hi))[0]
    a(f'''
    s_waitcnt vmcnt({nwait})
    v_lshlrev_b32 v{R.ldt}, 16, v{R.ldt}
    v_lshlrev_b32 v{R.dsk}, 16, v{R.dsk}
    s_mov_b32 s68, 0x{l2hi:08x}
    v_mul_f32 v{t[0]}, s68, v{R.ldt}
    v_fma_f32 v{t[1]}, v{R.ldt}, s68, -v{t[0]}
    v_exp_f32 v{t[0]}, v{t[0]}
    v_fmac_f32 v{t[1]}, {hexf(LOG2E - l2hi_f)}, v{R.ldt}
    v_mul_f32 v{t[1]}, {hexf(math.log(2.0))}, v{t[1]}
    v_fmac_f32 v{t[0]}, v{t[0]}, v{t[1]}
    v_cvt_pk_bf16_f32 v{t[0]}, v{t[0]}, v{t[0]}
    v_and_b32 v{R.dt}, 0xffff0000, v{t[0]}
    s_mov_b32 m0, s66
    s_mov_b32 s69, 0
    ''')
    Lp = a.newlabel('kpass')
    a.label(Lp)
    x = R.x
    a(f'''
    v_lshlrev_b32 v{R.er}, 16, v{R.par[0]}
    v_lshlrev_b32 v{R.ar}, 16, v{R.par[1]}
    v_lshlrev_b32 v{x[0]}, 16, v{R.par[2]}
    v_lshlrev_b32 v{x[0]+1}, 16, v{R.par[3]}
    v_lshlrev_b32 v{x[1]}, 16, v{R.par[4]}
    v_lshlrev_b32 v{x[1]+1}, 16, v{R.par[5]}
    v_mul_f32 v{R.er}, v{R.dt}, v{R.er}
    v_mul_f32 v{R.ar}, v{R.dt}, v{R.ar}
    v_mul_f32 v{x[0]}, v{R.dt}, v{x[0]}
    v_mul_f32 v{x[0]+1}, v{R.dt}, v{x[0]+1}
    v_mul_f32 v{R.er}, s68, v{R.er}
    v_mul_f32 v{R.ar}, 0.15915494, v{R.ar}
    ''')
    for y in cmul(R.w[0], x[0], x[1]):
        a(y)
    for z, e in ((R.z1, 1.0), (R.z8, 8.0), (R.z256, 256.0)):
        if e == 1.0:
            a(f'v_exp_f32 v{t[0]}, v{R.er}\nv_fract_f32 v{t[1]}, v{R.ar}')
        else:
            a(f'''
            v_mul_f32 v{t[0]}, {hexf(e)}, v{R.er}
            v_mul_f32 v{t[1]}, {hexf(e)}, v{R.ar}
            v_exp_f32 v{t[0]}, v{t[0]}
            v_fract_f32 v{t[1]}, v{t[1]}
            ''')
        a(f'''
        v_cos_f32 v{z}, v{t[1]}
        v_sin_f32 v{z+1}, v{t[1]}
        v_mul_f32 v{z}, v{t[0]}, v{z}
        v_mul_f32 v{z+1}, v{t[0]}, v{z+1}
        ''')
    npk = [0]

    def putA(reg, e):
        p = R.pk[npk[0] & 3]; npk[0] += 1
        return [f'v_cvt_pk_bf16_f32 v{p}, v{reg}, -v{reg+1}', f'ds_write_addtid_b32 v{p} offset:{EXPS.index(e)*KROW}']

    def putB(reg, i):
        p = R.pk[npk[0] & 3]; npk[0] += 1
        return [f'v_cvt_pk_bf16_f32 v{p}, v{reg}, v{reg+1}', f'ds_write_addtid_b32 v{p} offset:{(27+i)*KROW}']
    w = R.w
    sa = [([], (w[0], 'A', 0))]
    for j in range(1, 9):
        sa.append((cmul(w[j], w[j-1], R.z1), (w[j], 'A', j) if j < 8 else None))
    cur = {0: w[0], 2: w[2], 4: w[4], 6: w[6], 8: w[8]}
    spare = [w[1], w[3], w[5], w[7], x[0], x[1]]
    for base, js in ((256, (0, 2, 4, 6, 8)), (512, (0, 4, 8)), (768, (0, 4, 8)), (1024, (0, 8)), (1280, (0, 8)), (1536, (0, 8)), (1792, (0, 8))):
        for j in js:
            d = spare.pop(0)
            sa.append((cmul(d, cur[j], R.z256), (d, 'A', base+j)))
            spare.append(cur[j]); cur[j] = d
    c = R.c
    sb0 = [(cmul(R.z16, R.z8, R.z8), (R.z16, 'B', 2))]
    prev = R.z16
    for i in range(4, 32, 2):
        d = c[(i >> 1) & 1]
        sb0.append((cmul(d, prev, R.z16), (d, 'B', i))); prev = d
    sb1 = [([], (R.z8, 'B', 1))]
    prev = R.z8
    for i in range(3, 32, 2):
        d = c[2 + ((i >> 1) & 1)]
        sb1.append((cmul(d, prev, R.z16), (d, 'B', i))); prev = d
    a(f'v_mov_b32 v{t[0]}, 0x00003f80\nds_write_addtid_b32 v{t[0]} offset:{27*KROW}')
    ia = ib0 = ib1 = 0
    pend = []
    while ia < len(sa) or ib0 < len(sb0) or ib1 < len(sb1):
        grp = []
        if ib0 < len(sb0): grp.append(sb0[ib0]); ib0 += 1
        if ia < len(sa): grp.append(sa[ia]); ia += 1
        if ib1 < len(sb1) and ib1 <= ib0 - 1 + (1 if ib0 >= len(sb0) else 0): grp.append(sb1[ib1]); ib1 += 1
        if ia < len(sa) and ia > 9: grp.append(sa[ia]); ia += 1
        for g in grp:
            if g[0]: a(g[0][0])
        for y in pend: a(y)
        pend = []
        for g in grp:
            if g[0]: a(g[0][1])
        st = []
        for g in grp:
            if g[1]:
                reg, kind, e = g[1]
                st.append(putA(reg, e) if kind == 'A' else putB(reg, e))
        for y in st: a(y[0])
        pend = [y[1] for y in st]
    for y in pend: a(y)
    for k in range(8):
        a(f'ds_read_b128 {v(R.fA[k],4)}, v{R.vA} offset:{32*k}')
        a(f'ds_read_b128 {v(R.fB[k],4)}, v{R.vB} offset:{32*k}')
    for i in range(6):
        a(f'v_lshrrev_b32 v{R.par[i]}, 16, v{R.par[i]}')
    L1, Lj = a.newlabel('kacc'), a.newlabel('kj')
    a(f's_cmp_lg_u32 s69, 0\ns_cbranch_scc1 {L1}')
    for j in range(16):
        a(f'v_mov_b32 v{R.acc+j}, 0')
    a.label(L1)
    for k in range(8):
        a(f's_waitcnt lgkmcnt({min(14-2*k, 14)})')
        if k == 0: a('s_nop 0')
        a(f'v_mfma_f32_32x32x16_bf16 {v(R.acc,16)}, {v(R.fA[k],4)}, {v(R.fB[k],4)}, {v(R.acc,16)}')
    a(f'''
    s_add_u32 s69, s69, 1
    s_cmp_lt_u32 s69, 2
    s_cbranch_scc1 {Lp}
    s_mul_i32 s67, s{sCH}, {KG_STRIDE}
    s_add_u32 s67, s67, {WS_KG}
    v_cndmask_b32 v{R.dsk}, 0, v{R.dsk}, s[74:75]
    s_nop 7
    ''')
    g = R.acc; o = R.o
    a(f'v_add_f32 v{g}, v{g}, v{R.dsk}')
    for j in range(4):
        a(f'v_cvt_pk_bf16_f32 v{o+j}, v{g+7-2*j}, v{g+6-2*j}')
    a(f'buffer_store_dwordx4 {v(o,4)}, v{R.vS0}, {ws}, s67 offen{SC}')
    for b, r in enumerate((8, 11)):
        d = o + 4 + 4*b
        a(f'''
        v_cvt_pk_bf16_f32 v{t[0]}, v{g+r}, v{g+r+1}
        v_cvt_pk_bf16_f32 v{d}, v{g+r+2}, v{g+r+2}
        v_cvt_pk_bf16_f32 v{d+3}, v{g+r}, v{g+r}
        v_perm_b32 v{d+1}, v{d}, v{t[0]}, v{R.sel1}
        v_perm_b32 v{d+2}, v{d}, v{t[0]}, v{R.sel2}
        buffer_store_dwordx4 {v(d,4)}, v{R.vS1}, {ws}, s67 offen offset:{512*(1-b)}{SC}
        ''')
    d = o + 12
    a(f'''
    v_cvt_pk_bf16_f32 v{d}, v{g+15}, v{g+15}
    v_cvt_pk_bf16_f32 v{d+2}, v{g+14}, v{g+14}
    v_cvt_pk_bf16_f32 v{d+3}, v{g+14}, v{g+14}
    v_perm_b32 v{d+1}, v{d}, v{d+2}, v{R.sel3}
    v_mov_b32 v{g+4}, 0
    v_mov_b32 v{g+5}, 0
    v_mov_b32 v{g+6}, 0
    v_mov_b32 v{g+7}, 0
    buffer_store_dwordx4 {v(d,4)}, v{R.vS3}, {ws}, s67 offen{SC}
    buffer_store_dwordx4 {v(g+4,4)}, v{R.vZ}, {ws}, s67 offen{SC}
    ''')


def ut_issue(a, t, base):
    a(f'''
    s_lshr_b32 s64, s62, 1
    s_lshl_b32 s64, s64, 6
    s_mul_i32 s64, s64, 1152
    s_and_b32 s65, s62, 1
    s_mul_i32 s65, s65, 576
    s_add_u32 s64, s64, s65
    s_sub_u32 s64, s64, 1152
    s_lshl_b32 s65, s3, 10
    ''')
    for i in range(5):
        a(f'''
        v_add_u32 v{t[0]}, {512*i}, v0
        v_mul_u32_u24 v{t[1]}, 1821, v{t[0]}
        v_lshrrev_b32 v{t[1]}, 16, v{t[1]}
        v_mul_u32_u24 v{t[2]}, {1152-576}, v{t[1]}
        v_lshl_add_u32 v{t[2]}, v{t[0]}, 4, v{t[2]}
        v_add_u32 v{t[2]}, s64, v{t[2]}
        s_add_u32 m0, s65, {base + 8192*i}
        ''')
        if i == 4:
            a(f'''
            v_cmp_ge_u32 s[78:79], 64, v{t[1]}
            v_mov_b32 v{t[0]}, {OOB}
            s_nop 0
            v_cndmask_b32 v{t[2]}, v{t[0]}, v{t[2]}, s[78:79]
            ''')
        else:
            a('s_nop 0')
        a(dma(SRD_U, t[2], '0'))


UT_PRIV = 40960


def ut_setup(a, t):
    a(f'''
    v_lshrrev_b32 v{t[3]}, 5, v1
    v_bfe_u32 v{t[0]}, v1, 2, 2
    v_lshl_add_u32 v{t[0]}, v{t[3]}, 3, v{t[0]}
    v_mul_u32_u24 v{t[0]}, 576, v{t[0]}
    v_bfe_u32 v{t[2]}, v1, 4, 1
    v_lshl_add_u32 v{t[0]}, v{t[2]}, 5, v{t[0]}
    v_and_b32 v{t[2]}, 3, v1
    v_lshl_add_u32 v{t[0]}, v{t[2]}, 3, v{t[0]}
    s_lshl_b32 s64, s3, 6
    v_add_u32 v{t[0]}, s64, v{t[0]}
    v_and_b32 v{t[2]}, 7, v1
    v_xor_b32 v{t[3]}, v{t[3]}, v{t[2]}
    v_and_b32 v{t[1]}, 31, v1
    v_lshlrev_b32 v{t[1]}, 7, v{t[1]}
    v_lshl_add_u32 v{t[1]}, v{t[3]}, 4, v{t[1]}
    s_lshl_b32 s64, s3, 13
    s_add_u32 s64, s64, {UT_PRIV}
    v_add_u32 v{t[1]}, s64, v{t[1]}
    v_lshrrev_b32 v{t[3]}, 3, v1
    v_xor_b32 v{t[2]}, v{t[2]}, v{t[3]}
    v_lshlrev_b32 v{t[3]}, 13, v{t[3]}
    v_lshl_add_u32 v{t[3]}, v{t[2]}, 4, v{t[3]}
    v_lshl_add_u32 v{t[2]}, v1, 4, s64
    s_lshr_b32 s64, s62, 1
    s_lshl_b32 s64, s64, 7
    s_and_b32 s65, s62, 1
    s_mul_i32 s65, s65, 9
    s_add_u32 s65, s65, s3
    s_lshl_b32 s65, s65, 18
    s_add_u32 s65, s65, s64
    s_add_u32 s65, s65, {WS_UT}
    ''')


def ut_group(a, t, d):
    ws = f's[{SRD_WS}:{SRD_WS+3}]'
    for k in range(8):
        cp, th = k >> 2, k & 3
        o = (16*th + cp) * 576
        a(f'ds_read_b64_tr_b16 {v(d+4*k,2)}, v{t[0]} offset:{o}')
        a(f'ds_read_b64_tr_b16 {v(d+4*k+2,2)}, v{t[0]} offset:{o + 4*576}')
    for th in range(4):
        a(f'v_xor_b32 v{t[4]}, {32*th}, v{t[1]}')
        for cp in range(2):
            k = 4*cp + th
            if th == 0 and cp == 0:
                a('s_waitcnt lgkmcnt(0)')
            a(f'ds_write_b128 v{t[4]}, {v(d+4*k,4)} offset:{4096*cp}')
    for i in range(8):
        a(f'ds_read_b128 {v(d+4*i,4)}, v{t[2]} offset:{1024*i}')
    for i in range(8):
        a(f's_add_u32 s64, s65, {(i&3)*65536 + (i>>2)*4096}')
        a(f's_waitcnt lgkmcnt({7-i})')
        a(f'buffer_store_dwordx4 {v(d+4*i,4)}, v{t[3]}, {ws}, s64 offen{SC}')


CV_SLOT = 17920
CV_U = 8448
CV_BASE = 90112
CV_XCH = 49152


class ConvRegs:
    def __init__(self):
        ra = RegAlloc(2, 250)
        self.t = [ra.get() for _ in range(6)]
        self.vA, self.vB = ra.get(), ra.get()
        self.z = ra.get(4, 4)
        self.A = [[ra.get(4, 4) for _ in range(8)] for _ in range(2)]
        self.B = [[ra.get(4, 4) for _ in range(8)] for _ in range(2)]
        self.acc = [ra.get(4, 4) for _ in range(8)]


def conv_setup(a):
    a(f'''
    s_mul_i32 s64, s{sXCD}, 24
    s_add_u32 s64, s64, s{sIDX}
    s_lshl_b32 s64, s64, 1
    s_lshl_b32 s65, s{sXCD}, 3
    s_add_u32 s65, s65, s{sIDX}
    s_mul_i32 s65, s65, 3
    s_add_u32 s65, s65, {384 - 72}
    s_cmp_lt_u32 s{sIDX}, 24
    s_cselect_b32 s64, s64, s65
    s_cselect_b32 s65, 4, 6
    s_lshr_b32 s66, s3, 1
    s_add_u32 s64, s64, s66
    ''')


def conv_issue(a, R, base):
    t = R.t
    a(f'''
    s_mul_i32 s66, s66, {CV_SLOT}
    s_add_u32 s66, s66, {base}
    s_and_b32 s67, s3, 1
    s_mul_i32 s68, s67, 4224
    s_add_u32 s68, s68, s66
    s_mul_i32 s69, s64, {KG_STRIDE}
    s_add_u32 s69, s69, {WS_KG + 4}
    s_lshl_b32 s70, s67, 2
    s_sub_u32 s69, s69, s70
    v_lshlrev_b32 v{t[0]}, 4, v1
    s_mov_b32 m0, s68
    s_mul_i32 s70, s67, 4640
    ''')
    for i in range(4):
        a(dma(SRD_WS, t[0], 's69', 1024*i))
    a(f'''
    s_add_u32 s70, s70, s66
    s_add_u32 s70, s70, {CV_U}
    s_add_u32 m0, s70, 512
    s_lshl_b32 s69, s64, 13
    s_lshl_b32 s71, s67, 12
    s_add_u32 s69, s69, s71
    s_add_u32 s69, s69, {WS_UT}
    ''')
    for i in range(4):
        a(dma(SRD_WS, t[0], 's69', 1024*i))
    a(f'''
    v_mov_b32 v{R.z}, 0
    v_mov_b32 v{R.z+1}, 0
    v_lshl_add_u32 v{t[1]}, v1, 3, s70
    v_and_b32 v{t[2]}, 7, v1
    v_lshl_add_u32 v{t[2]}, v{t[2]}, 3, s68
    ds_write_b64 v{t[1]}, {v(R.z,2)}
    ds_write_b64 v{t[2]}, {v(R.z,2)} offset:4096
    ''')
    a(f'''
    v_and_b32 v{t[1]}, 15, v1
    v_lshrrev_b32 v{t[2]}, 4, v1
    v_and_b32 v{t[3]}, 1, v1
    v_lshrrev_b32 v{t[1]}, 1, v{t[1]}
    s_lshl_b32 s71, s67, 8
    s_sub_u32 s71, s66, s71
    v_mul_u32_u24 v{t[4]}, 4224, v{t[3]}
    v_lshl_add_u32 v{t[4]}, v{t[2]}, 4, v{t[4]}
    v_lshlrev_b32 v{t[5]}, 3, v{t[1]}
    v_sub_u32 v{t[4]}, v{t[4]}, v{t[5]}
    v_add_u32 v{t[4]}, {2*2044 - 64*59}, v{t[4]}
    v_add_u32 v{R.vA}, s71, v{t[4]}
    v_mul_u32_u24 v{t[4]}, 4640, v{t[3]}
    v_lshl_add_u32 v{t[4]}, v{t[2]}, 4, v{t[4]}
    v_lshl_add_u32 v{t[4]}, v{t[1]}, 6, v{t[4]}
    v_add_u32 v{t[4]}, {CV_U + 512 - 192}, v{t[4]}
    v_add_u32 v{R.vB}, s71, v{t[4]}
    ''')


def conv_compute(a, R, base):
    t = R.t

    def reads(r):
        b = r & 1
        L = []
        for p in range(8):
            L.append(f'ds_read_b128 {v(R.B[b][7-p],4)}, v{R.vB} offset:{64*(8*(7-p)+3-r)}')
            o = 64*(59-8*p-r)
            L.append(f'ds_read_b64 {v(R.A[b][p],2)}, v{R.vA} offset:{o}')
            L.append(f'ds_read_b64 {v(R.A[b][p]+2,2)}, v{R.vA} offset:{o+8}')
        return L
    for x in reads(0):
        a(x)
    for r in range(4):
        b = r & 1
        mf = []
        for p in range(8):
            for c in range(7, p-1, -1):
                C = '0' if (r == 0 and p == 0) else v(R.acc[c], 4)
                mf.append(f'v_mfma_f32_16x16x32_bf16 {v(R.acc[c],4)}, {v(R.A[b][p],4)}, {v(R.B[b][c-p],4)}, {C}')
        a('s_waitcnt lgkmcnt(0)')
        nx = reads(r+1) if r < 3 else []
        for x in interleave(mf[:26], nx) + mf[26:]:
            a(x)
    a(f'''
    s_lshl_b32 s68, s3, 12
    s_xor_b32 s69, s68, 4096
    v_add_u32 v{t[0]}, {CV_XCH}, v{t[0]}
    v_add_u32 v{t[1]}, s69, v{t[0]}
    v_add_u32 v{t[0]}, s68, v{t[0]}
    v_and_b32 v{t[2]}, 15, v1
    v_lshrrev_b32 v{t[3]}, 4, v1
    v_lshlrev_b32 v{t[2]}, 5, v{t[2]}
    v_lshl_add_u32 v{t[2]}, v{t[3]}, 3, v{t[2]}
    s_lshl_b32 s68, s64, 12
    s_add_u32 s68, s68, {WS_YT}
    ''')


def conv_send(a, R, rh):
    for i in range(4):
        a(f'ds_write_b128 v{R.t[0]}, {v(R.acc[2*i+1-rh],4)} offset:{1024*i}')
    a('s_waitcnt lgkmcnt(0)')


def conv_finish(a, R, rh):
    ws = f's[{SRD_WS}:{SRD_WS+3}]'
    t = R.t
    for i in range(4):
        a(f'ds_read_b128 {v(R.A[0][i],4)}, v{t[1]} offset:{1024*i}')
    for i in range(4):
        c = 2*i + rh
        a(f's_waitcnt lgkmcnt({3-i})')
        for j in range(4):
            a(f'v_add_f32 v{R.acc[c]+j}, v{R.acc[c]+j}, v{R.A[0][i]+j}')
        a(f'v_cvt_pk_bf16_f32 v{R.B[0][i]}, v{R.acc[c]}, v{R.acc[c]+1}')
        a(f'v_cvt_pk_bf16_f32 v{R.B[0][i]+1}, v{R.acc[c]+2}, v{R.acc[c]+3}')
        a(f'buffer_store_dwordx2 {v(R.B[0][i],2)}, v{t[2]}, {ws}, s68 offen offset:{512*c}{SC}')


def yt_phase(a, t, d):
    out = f's[{SRD_OUT}:{SRD_OUT+3}]'
    a(f'''
    v_lshrrev_b32 v{t[0]}, 3, v1
    v_and_b32 v{t[1]}, 7, v1
    v_bfe_u32 v{t[2]}, v1, 4, 1
    v_lshlrev_b32 v{t[2]}, 2, v{t[2]}
    v_xor_b32 v{t[1]}, v{t[1]}, v{t[2]}
    v_lshlrev_b32 v{t[0]}, 12, v{t[0]}
    v_lshl_add_u32 v{t[0]}, v{t[1]}, 4, v{t[0]}
    s_and_b32 s70, s3, 3
    s_and_b32 s71, s{sIDX}, 7
    s_mul_i32 s71, s71, 9
    s_add_u32 s71, s71, s70
    s_lshl_b32 s72, s{sXCD}, 2
    s_lshr_b32 s73, s{sIDX}, 3
    s_add_u32 s72, s72, s73
    s_lshl_b32 s64, s71, 15
    s_lshl_b32 s65, s72, 7
    s_add_u32 s64, s64, s65
    s_add_u32 s64, s64, {WS_YT}
    s_mul_i32 s65, s70, 3072
    s_add_u32 s65, s65, {QSTAGE}
    s_mov_b32 m0, s65
    s_nop 0
    ''')
    Ls = a.newlabel('ytskip')
    for i in range(3):
        if i == 2:
            a(f's_cmp_lg_u32 s70, 0\ns_cbranch_scc1 {Ls}')
        a(dma(SRD_WS, t[0], 's64'))
        if i < 2:
            a(f's_add_u32 m0, s65, {1024*(i+1)}\ns_add_u32 s64, s64, {4*32768}')
    a.label(Ls)
    a(f'''
    v_bfe_u32 v{t[1]}, v1, 2, 2
    v_lshrrev_b32 v{t[2]}, 4, v1
    v_bfe_u32 v{t[3]}, v1, 3, 1
    v_lshlrev_b32 v{t[3]}, 1, v{t[3]}
    v_xor_b32 v{t[3]}, v{t[3]}, v{t[2]}
    v_lshlrev_b32 v{t[1]}, 7, v{t[1]}
    v_lshl_add_u32 v{t[1]}, v{t[3]}, 5, v{t[1]}
    v_and_b32 v{t[3]}, 3, v1
    v_lshl_add_u32 v{t[1]}, v{t[3]}, 3, v{t[1]}
    v_add_u32 v{t[1]}, s65, v{t[1]}
    v_lshlrev_b32 v{t[3]}, 1, v{t[3]}
    v_bfe_u32 v{t[0]}, v1, 2, 2
    v_lshl_add_u32 v{t[3]}, v{t[0]}, 3, v{t[3]}
    v_bfe_u32 v{t[0]}, v1, 4, 1
    v_add_u32 v{t[3]}, v{t[3]}, v{t[0]}
    v_and_b32 v{t[0]}, 32, v1
    v_add_u32 v{t[3]}, v{t[3]}, v{t[0]}
    v_mul_u32_u24 v{t[3]}, 2304, v{t[3]}
    s_mul_i32 s64, s72, {64*2304}
    s_lshl_b32 s66, s71, 4
    s_add_u32 s64, s64, s66
    s_waitcnt vmcnt(0)
    ''')
    Le = a.newlabel('ytend')
    for i in range(3):
        if i == 2:
            a(f's_cmp_lg_u32 s70, 0\ns_cbranch_scc1 {Le}')
        r = d + 4*i
        a(f'ds_read_b64_tr_b16 {v(r,2)}, v{t[1]} offset:{1024*i}')
        a(f'ds_read_b64_tr_b16 {v(r+2,2)}, v{t[1]} offset:{1024*i + 512}')
        a('s_waitcnt lgkmcnt(0)')
        a(f'buffer_store_dwordx4 {v(r,4)}, v{t[3]}, {out}, s64 offen offset:{64*i}')
    a.label(Le)
```

```python
import sys
from asmlib import *
from layout import *
import phases
from phases import *
from ssm import *

NAME = 'concat_heads__ssm_conv_s4__mha_block__prompt'
LDS = 163840
DBGCOPY = None
SPIN_MAX = 1 << 19
FA, FB, FC = WS_FLAG, WS_FLAG + 1024, WS_FLAG + 2048
sFA, sFB, sFC = 84, 85, 86
vSY = 244
ws = f's[{SRD_WS}:{SRD_WS+3}]'


def descriptor(name, vgpr=256):
    return f'''.amdhsa_kernel {name}
  .amdhsa_next_free_vgpr {vgpr}
  .amdhsa_next_free_sgpr 102
  .amdhsa_accum_offset {vgpr}
  .amdhsa_group_segment_fixed_size 0
  .amdhsa_kernarg_size 120
  .amdhsa_user_sgpr_count 2
  .amdhsa_user_sgpr_kernarg_segment_ptr 1
  .amdhsa_system_sgpr_workgroup_id_x 1
.end_amdhsa_kernel
'''


def flags_setup(a):
    a(f'''
    s_mul_i32 s{sFB}, s{sXCD}, 24
    s_add_u32 s{sFB}, s{sFB}, s{sIDX}
    s_lshl_b32 s87, s{sXCD}, 3
    s_add_u32 s87, s87, s{sIDX}
    s_add_u32 s87, s87, {192 - 24}
    s_cmp_lt_u32 s{sIDX}, 24
    s_cselect_b32 s{sFB}, s{sFB}, s87
    s_lshl_b32 s{sFB}, s{sFB}, 2
    s_add_u32 s{sFB}, s{sFB}, {FB}
    s_and_b32 s{sFC}, s{sIDX}, 7
    s_lshl_b32 s{sFC}, s{sFC}, 5
    s_lshl_b32 s87, s{sXCD}, 2
    s_add_u32 s{sFC}, s{sFC}, s87
    s_lshr_b32 s87, s{sIDX}, 3
    s_add_u32 s{sFC}, s{sFC}, s87
    s_lshl_b32 s{sFC}, s{sFC}, 2
    s_add_u32 s{sFC}, s{sFC}, {FC}
    ''')


def flags_clear(a):
    L = a.newlabel('fclr')
    a(f'''
    s_cmp_lg_u32 s3, 7
    s_cbranch_scc1 {L}
    v_mov_b32 v{vSY}, 0
    s_mov_b64 exec, 1
    buffer_store_dword v{vSY}, v{vSY}, {ws}, s{sFA} offen sc1
    buffer_store_dword v{vSY}, v{vSY}, {ws}, s{sFB} offen sc1
    buffer_store_dword v{vSY}, v{vSY}, {ws}, s{sFC} offen sc1
    s_mov_b64 exec, -1
    ''')
    a.label(L)


def flags_arrive(a):
    L = a.newlabel('farr')
    a(f'''
    s_cmp_lg_u32 s3, 7
    s_cbranch_scc1 {L}
    v_mov_b32 v{vSY}, 0
    v_mov_b32 v{vSY+1}, 1
    s_mov_b64 exec, 1
    global_atomic_add v{vSY}, v{vSY+1}, s[{sDBG}:{sDBG+1}] sc1
    s_mov_b64 exec, -1
    ''')
    a.label(L)


def flag_set(a, sF, wave):
    L = a.newlabel('fset')
    a(f'''
    s_cmp_lg_u32 s3, {wave}
    s_cbranch_scc1 {L}
    v_mov_b32 v{vSY}, 0
    v_mov_b32 v{vSY+1}, 1
    s_mov_b64 exec, 1
    buffer_store_dword v{vSY+1}, v{vSY}, {ws}, s{sF} offen sc1
    s_mov_b64 exec, -1
    ''')
    a.label(L)


def spin(a, load, test):
    L, Ld = a.newlabel('spin'), a.newlabel('spun')
    a('s_mov_b32 s87, 0')
    a.label(L)
    a(load)
    a('s_waitcnt vmcnt(0)')
    a(test)
    a(f'''
    s_add_u32 s87, s87, 1
    s_cbranch_vccz {Ld}
    s_sleep 1
    s_cmp_lt_u32 s87, {SPIN_MAX}
    s_cbranch_scc1 {L}
    ''')
    a.label(Ld)


def p1_body(a, join, ST):
    Lssm, Lv, Lq1, Lv1 = [a.newlabel(x) for x in ('ssm', 'v', 'q1', 'v1')]
    a(f's_cmp_ge_u32 s{sIDX}, 24\ns_cbranch_scc1 {Lssm}')
    gemm_setup(a)
    a(f'''
    s_lshl_b32 s{sFA}, s63, 4
    s_add_u32 s{sFA}, s{sFA}, s62
    s_lshl_b32 s{sFA}, s{sFA}, 2
    s_add_u32 s{sFA}, s{sFA}, {FA}
    ''')
    a(f's_cmp_ge_u32 s63, 8\ns_cbranch_scc1 {Lv}')
    a(f's_cmp_ge_u32 s3, 4\ns_cbranch_scc1 {Lq1}')
    gemm_phase(a, 'qk', 0, ST); a(f's_branch {join}')
    a.label(Lq1)
    flags_clear(a)
    gemm_phase(a, 'qk', 1, ST, None, lambda: flags_arrive(a)); a(f's_branch {join}')
    a.label(Lv)
    a(f's_cmp_ge_u32 s3, 4\ns_cbranch_scc1 {Lv1}')
    gemm_phase(a, 'v', 0, ST); a(f's_branch {join}')
    a.label(Lv1)
    flags_clear(a)
    gemm_phase(a, 'v', 1, ST, None, lambda: flags_arrive(a)); a(f's_branch {join}')
    a.label(Lssm)
    R = KgenRegs()
    a(f'''
    s_lshl_b32 s62, s{sXCD}, 3
    s_add_u32 s62, s62, s{sIDX}
    s_sub_u32 s62, s62, 24
    s_mul_i32 s63, s62, 9
    s_add_u32 s63, s63, s3
    s_lshl_b32 s{sFA}, s62, 2
    s_add_u32 s{sFA}, s{sFA}, {FA + 4*192}
    v_lshlrev_b32 v{R.vP}, 2, v1
    ''')
    flags_clear(a)
    ut_issue(a, R.ut, 0)
    kgen_load(a, R, 63)
    kgen_setup(a, R)
    ut_setup(a, R.ut)
    a('s_waitcnt vmcnt(8)\ns_barrier')
    stamp(a, 1, ST)
    flags_arrive(a)
    Lu, Lu2 = a.newlabel('utg'), a.newlabel('utd')
    a('s_mov_b32 s80, 0')
    a.label(Lu)
    ut_group(a, R.ut, R.ud)
    a(f'''
    s_add_u32 s81, s80, s3
    s_cmp_lg_u32 s81, 1
    s_cbranch_scc1 {Lu2}
    s_mov_b32 s80, 8
    v_add_u32 v{R.ut[0]}, {64*7}, v{R.ut[0]}
    s_add_u32 s65, s65, {7 << 18}
    s_branch {Lu}
    ''')
    a.label(Lu2)
    a('s_barrier')
    stamp(a, 2, ST)
    Lk = a.newlabel('kch')
    a('s_mov_b32 s80, 0\ns_waitcnt vmcnt(8)')
    a.label(Lk)
    kgen_compute(a, R, 63, 63)
    stamp(a, 3, ST)
    a(f'''
    s_add_u32 s81, s3, s80
    s_cmp_lg_u32 s81, 0
    s_cbranch_scc1 {join}
    s_mov_b32 s80, 1
    s_add_u32 s63, s63, 8
    ''')
    kgen_load(a, R, 63)
    a(f's_waitcnt vmcnt(0)\ns_branch {Lk}')


def build(ST=False):
    a = Asm()
    ref = open('cdna_kernels/%s.s.ref' % NAME).read().split('\n')
    head = [l for l in ref if l.startswith(';') and '@launch' not in l and 'Override launch' not in l and 'grid=ceil' not in l]
    a.lines += head
    a.lines.append(f'; @launch grid=(256,1,1) block=(512,1,1) lds={LDS}')
    K = NAME + '_kernel'
    a(f'.amdgcn_target "amdgcn-amd-amdhsa--gfx950"\n.text\n.globl {K}\n.p2align 8\n.type {K},@function')
    a.label(K)
    prologue(a, 'L_end')
    stamp(a, 0, ST)
    flags_setup(a)
    p1_body(a, 'L_join', ST)
    a.label('L_join')
    cnt_ld = f'global_load_dword v{vSY+2}, v{vSY+4}, s[{sDBG}:{sDBG+1}] sc1'
    ssm_ld = f'buffer_load_dword v{vSY+3}, v{vSY+5}, {ws}, s88 offen sc1'
    a(f'''
    v_mov_b32 v{vSY+4}, 0
    v_lshlrev_b32 v{vSY+5}, 2, v1
    s_mov_b32 s88, {FA + 4*192}
    s_movk_i32 s89, 256
    {cnt_ld}
    s_waitcnt vmcnt(0)
    s_barrier
    ''')
    flag_set(a, sFA, 7)
    stamp(a, 4, ST)
    Lc = a.newlabel('cntok')
    a(f'v_cmp_ne_u32 vcc, s89, v{vSY+2}\ns_nop 0\ns_cbranch_vccz {Lc}')
    spin(a, cnt_ld, f'v_cmp_ne_u32 vcc, s89, v{vSY+2}')
    a.label(Lc)
    C = ConvRegs()
    Lidle, L1, Lload, Lcend = [a.newlabel(x) for x in ('cidle', 'c1', 'cload', 'cend')]
    conv_setup(a)
    attn_setup(a)
    a(f's_cmp_ge_u32 s3, 6\ns_cbranch_scc1 {Lload}')
    a(f's_cmp_ge_u32 s3, s65\ns_cbranch_scc1 {Lidle}')
    spin(a, ssm_ld, f'v_cmp_ne_u32 vcc, 1, v{vSY+3}')
    conv_issue(a, C, CV_BASE)
    a('s_waitcnt vmcnt(0) lgkmcnt(0)\ns_barrier')
    stamp(a, 12, ST)
    conv_compute(a, C, CV_BASE)
    stamp(a, 13, ST)
    a(f's_cmp_eq_u32 s67, 1\ns_cbranch_scc1 {L1}')
    conv_send(a, C, 0); a('s_barrier'); conv_finish(a, C, 0); a(f's_branch {Lcend}')
    a.label(L1)
    conv_send(a, C, 1); a('s_barrier'); conv_finish(a, C, 1); a(f's_branch {Lcend}')
    a.label(Lidle)
    a(f's_barrier\ns_barrier\ns_branch {Lcend}')
    a.label(Lload)
    a(f'''
    s_barrier
    v_and_b32 v{vSY+6}, 15, v1
    v_lshrrev_b32 v{vSY+7}, 4, v1
    v_min_u32 v{vSY+7}, 2, v{vSY+7}
    v_and_b32 v{vSY+5}, 1, v1
    s_lshl_b32 s64, s63, 1
    v_add_u32 v{vSY+5}, s64, v{vSY+5}
    v_cmp_eq_u32 s[64:65], 0, v{vSY+7}
    v_lshlrev_b32 v{vSY+7}, 6, v{vSY+7}
    s_lshr_b32 s66, s62, 3
    v_cndmask_b32 v{vSY+5}, v{vSY+6}, v{vSY+5}, s[64:65]
    v_add_u32 v{vSY+5}, v{vSY+5}, v{vSY+7}
    v_lshlrev_b32 v{vSY+5}, 2, v{vSY+5}
    s_lshl_b32 s88, s66, 6
    s_add_u32 s88, s88, {FA}
    v_lshlrev_b32 v2, 4, v1
    ''')
    spin(a, ssm_ld, f'v_cmp_ne_u32 vcc, 1, v{vSY+3}')
    stamp(a, 12, ST)
    kv_first(a, 2)
    a('s_barrier\ns_waitcnt vmcnt(0)')
    a.label(Lcend)
    a('s_barrier')
    stamp(a, 14, ST)
    Lhelp, Lz = a.newlabel('help'), a.newlabel('z')
    a(f's_cmp_ge_u32 s3, 4\ns_cbranch_scc1 {Lhelp}')
    R = AttnRegs()
    redo = attn_phase(a, R, ST)
    a('s_waitcnt vmcnt(0)\ns_barrier')
    flag_set(a, sFC, 0)
    a(f's_cmp_ge_u32 s{sIDX}, 24\ns_cbranch_scc1 L_end')
    out_setup(a)
    a(f's_branch {Lz}')
    a.label(Lhelp)
    O = OutRegs()
    a('v_lshlrev_b32 v2, 4, v1')
    kv_rest(a, 2)
    a('s_waitcnt vmcnt(0)\ns_barrier')
    flag_set(a, sFB, 4)
    a(f's_mov_b32 s88, {FB}')
    spin(a, f'buffer_load_dwordx4 v[{vSY}:{vSY+3}], v2, {ws}, s88 offen sc1',
         f'''v_and_b32 v{vSY}, v{vSY}, v{vSY+1}
         v_and_b32 v{vSY+2}, v{vSY+2}, v{vSY+3}
         v_and_b32 v{vSY}, v{vSY}, v{vSY+2}
         v_cmp_ne_u32 vcc, 1, v{vSY}''')
    yt_phase(a, [4, 5, 6, 7], 8)
    stamp(a, 15, ST)
    out_setup(a)
    out_wo_addr(a, O)
    a('s_barrier')
    a(f's_cmp_ge_u32 s{sIDX}, 24\ns_cbranch_scc1 L_end')
    out_issue_wo(a, O)
    a.label(Lz)
    stamp(a, 8, ST)
    a(f'''
    v_and_b32 v{vSY+5}, 31, v1
    v_lshlrev_b32 v{vSY+5}, 2, v{vSY+5}
    s_lshr_b32 s88, s62, 2
    s_lshl_b32 s88, s88, 7
    s_add_u32 s88, s88, {FC}
    ''')
    spin(a, ssm_ld, f'v_cmp_ne_u32 vcc, 1, v{vSY+3}')
    out_issue_o(a, O)
    out_phase(a, O, ST)
    if DBGCOPY is not None:
        a(f'''
        s_add_u32 s64, s2, s3
        s_cmp_lg_u32 s64, 0
        s_cbranch_scc1 L_end
        s_waitcnt vmcnt(0)
        v_lshlrev_b32 v2, 3, v1
        v_lshlrev_b32 v3, 2, v1
        s_mov_b32 s64, {WS_STAMP + DBGCOPY*128}
        s_mov_b64 exec, 0xffff
        buffer_load_dword v4, v2, {ws}, s64 offen sc0 sc1
        s_waitcnt vmcnt(0)
        v_readfirstlane_b32 s64, v4
        s_nop 3
        v_subrev_u32 v4, s64, v4
        global_store_dword v3, v4, s[{sDBG}:{sDBG+1}]
        ''')
    a.label('L_end'); a('s_endpgm')
    redo()
    a('.section .rodata,"a"')
    return a.text() + '.p2align 6\n' + descriptor(K)


if __name__ == '__main__':
    st = 2 if '--rt' in sys.argv else (1 if '--stamp' in sys.argv else 0)
    for x in sys.argv:
        if x.startswith('--copy='): DBGCOPY = int(x[7:])
        if x.startswith('--rot='): phases.ROT = int(x[6:])
    out = [x for x in sys.argv[1:] if not x.startswith('--')]
    path = out[0] if out else 'cdna_kernels/%s.s' % NAME
    open(path, 'w').write(build(st))
    print('wrote', path)
```

```python
T = 2048
D = 576
H = 32
DH = 18
N = 128

KV_CHUNK = 18944
KV_HEAD = 8 * KV_CHUNK
WS_KV = 0
WS_QM = WS_KV + H * KV_HEAD
WS_QT = WS_QM + H * 65536
WS_O = WS_QT + H * 8192
WS_UT = WS_O + 128 * 18432
WS_YT = WS_UT + D * 4096
WS_OT = WS_YT + D * 4096
WS_FLAG = WS_OT + 32 * 8192
WS_NONCE = WS_FLAG + 3 * 32768
WS_END = WS_NONCE + 128
WS_STAMP = (WS_END + 4095) // 4096 * 4096
WS_SIZE = WS_STAMP + (1 << 20)

X_BYTES = T * D * 2
W_BYTES = D * 3 * D * 2
WO_BYTES = D * D * 2
OUT_BYTES = T * 2 * D * 2
```

```python
import math
from asmlib import *
from layout import *

sWG, sWAVE = 2, 3
SRD_X, SRD_W, SRD_WS, SRD_OUT, SRD_U, SRD_WO = 8, 12, 16, 20, 24, 28
sPAR = 32
sDBG = 48
sWSP = 50
sXCD, sIDX = 60, 61
vTID, vLANE = 0, 1
OOB = 0x7ffffff0

LOG2E = 1.4426950408889634
SC = ' sc1'
ROT = 3
LSTAMP = False


def prologue(a, endlab):
    a(f'''
    s_cmp_ge_u32 s2, 256
    s_cbranch_scc1 {endlab}
    s_load_dwordx2 s[4:5], s[0:1], 0
    s_load_dwordx16 s[32:47], s[0:1], 8
    s_load_dwordx8 s[52:59], s[0:1], 72
    s_load_dwordx4 s[48:51], s[0:1], 104
    v_lshrrev_b32 v2, 6, v0
    v_and_b32 v1, 63, v0
    s_and_b32 s{sXCD}, s2, 7
    v_readfirstlane_b32 s3, v2
    s_lshr_b32 s{sIDX}, s2, 3
    s_mov_b32 s{SRD_X+2}, {X_BYTES}
    s_mov_b32 s{SRD_X+3}, 0x00020000
    s_mov_b32 s{SRD_W+2}, {W_BYTES}
    s_mov_b32 s{SRD_W+3}, 0x00020000
    s_mov_b32 s{SRD_WS+2}, {WS_SIZE}
    s_mov_b32 s{SRD_WS+3}, 0x00020000
    s_mov_b32 s{SRD_OUT+2}, {OUT_BYTES}
    s_mov_b32 s{SRD_OUT+3}, 0x00020000
    s_mov_b32 s{SRD_U+2}, {X_BYTES}
    s_mov_b32 s{SRD_U+3}, 0x00020000
    s_mov_b32 s{SRD_WO+2}, {WO_BYTES}
    s_mov_b32 s{SRD_WO+3}, 0x00020000
    s_waitcnt lgkmcnt(0)
    s_mov_b32 s{SRD_U}, s4
    s_mov_b32 s{SRD_U+1}, s5
    s_mov_b32 s{SRD_X}, s52
    s_mov_b32 s{SRD_X+1}, s53
    s_mov_b32 s{SRD_W}, s54
    s_mov_b32 s{SRD_W+1}, s55
    s_mov_b32 s{SRD_WO}, s56
    s_mov_b32 s{SRD_WO+1}, s57
    s_mov_b32 s{SRD_OUT}, s58
    s_mov_b32 s{SRD_OUT+1}, s59
    s_mov_b32 s{SRD_WS}, s50
    s_mov_b32 s{SRD_WS+1}, s51
    ''')


def stamp(a, slot, on):
    if not on:
        return
    if LSTAMP:
        if slot < 100 and slot != 0: return
        slot = slot % 100
    elif slot >= 100:
        return
    if on == 3:
        a(f'''
        s_memrealtime s[96:97]
        v_mov_b32 v254, {slot*4}
        s_waitcnt lgkmcnt(0)
        s_and_b32 s96, s96, 0xffffff
        {'s_sub_u32 s96, 0x1000000, s96' if slot in (0, 4, 8) else ''}
        v_mov_b32 v252, s96
        s_mov_b64 s[96:97], exec
        s_mov_b64 exec, 1
        global_atomic_umax v254, v252, s[{sDBG}:{sDBG+1}]
        s_mov_b64 exec, s[96:97]
        ''')
        return
    a(f'''
    {'s_memrealtime' if on == 2 else 's_memtime'} s[96:97]
    s_lshl_b32 s98, s2, 3
    s_add_u32 s98, s98, s3
    s_lshl_b32 s98, s98, 7
    s_add_u32 s98, s98, {WS_STAMP + slot*8}
    v_mov_b32 v254, 0
    s_waitcnt lgkmcnt(0)
    v_mov_b32 v252, s96
    v_mov_b32 v253, s97
    s_mov_b64 s[96:97], exec
    s_mov_b64 exec, 1
    buffer_store_dwordx2 v[252:253], v254, s[{SRD_WS}:{SRD_WS+3}], s98 offen
    s_mov_b64 exec, s[96:97]
    ''')


def dma(srd, vaddr, soff, off=0):
    o = f' offset:{off}' if off else ''
    return f'buffer_load_dwordx4 v{vaddr}, s[{srd}:{srd+3}], {soff} offen{o}{SC if srd == SRD_WS else ""} lds'


def gemm_setup(a):
    a(f'''
    s_and_b32 s62, s{sXCD}, 3
    s_lshl_b32 s62, s62, 2
    s_and_b32 s64, s{sIDX}, 3
    s_add_u32 s62, s62, s64
    s_lshr_b32 s63, s{sXCD}, 2
    s_mul_i32 s63, s63, 6
    s_lshr_b32 s64, s{sIDX}, 2
    s_add_u32 s63, s63, s64
    ''')


XB, XS = 0, 16384
WB, WS_ = 49152, 20480
STG = 49152


def gemm_loader(a, ST, after_first_wait=None):
    ra = RegAlloc(2, 240)
    vX = [ra.get(), ra.get()]
    vW = [ra.get() for _ in range(5)]
    t0, t1, t2 = [ra.get() for _ in range(3)]
    sXo, sWo, sOff, sM, sMw = 64, 65, 66, 67, 68
    a(f'''
    v_lshrrev_b32 v{t0}, 3, v1
    v_and_b32 v{t1}, 7, v1
    v_lshrrev_b32 v{t2}, 1, v{t0}
    v_xor_b32 v{t1}, v{t1}, v{t2}
    v_mul_u32_u24 v{t0}, 1152, v{t0}
    v_lshl_add_u32 v{vX[0]}, v{t1}, 4, v{t0}
    v_xor_b32 v{t1}, 4, v{t1}
    v_lshl_add_u32 v{vX[1]}, v{t1}, 4, v{t0}
    v_add_u32 v{vX[1]}, {8*1152}, v{vX[1]}
    s_add_u32 s{sOff}, s62, s63
    s_mul_i32 s69, s{sOff}, 43
    s_lshr_b32 s69, s69, 7
    s_mul_i32 s69, s69, 3
    s_sub_u32 s{sOff}, s{sOff}, s69
    s_mul_i32 s{sOff}, s{sOff}, {ROT}
    s_and_b32 s70, s3, 1
    s_lshl_b32 s{sXo}, s62, 1
    s_add_u32 s{sXo}, s{sXo}, s70
    s_mul_i32 s{sXo}, s{sXo}, {64*1152}
    s_lshl_b32 s69, s{sOff}, 7
    s_add_u32 s{sXo}, s{sXo}, s69
    s_lshl_b32 s{sM}, s70, 13
    s_mul_i32 s{sMw}, s70, 10240
    s_add_u32 s{sMw}, s{sMw}, {WB}
    s_lshl_b32 s69, s{sOff}, 1
    s_add_u32 s69, s69, s70
    s_mul_i32 s69, s69, {32*3456}
    s_mul_i32 s{sWo}, s63, 288
    s_add_u32 s{sWo}, s{sWo}, s69
    ''')

    def xi(sl, i):
        a(f's_add_u32 m0, s{sM}, {XB + sl*XS + 1024*i}\ns_add_u32 s71, s{sXo}, {(i>>1)*16*1152}')
        a(dma(SRD_X, vX[i & 1], 's71'))

    def wi(sl, i):
        a(f's_add_u32 m0, s{sMw}, {sl*WS_ + 1024*i}\ns_add_u32 s71, s{sWo}, {(i//5)*16*3456}')
        a(dma(SRD_W, vW[i % 5], 's71'))
    for i in range(8):
        xi(0, i)
    for k in range(5):
        a(f'''
        v_add_u32 v{t0}, {64*k}, v1
        v_mul_u32_u24 v{t1}, 205, v{t0}
        v_lshrrev_b32 v{t1}, 12, v{t1}
        v_mul_u32_u24 v{t2}, 20, v{t1}
        v_sub_u32 v{t0}, v{t0}, v{t2}
        v_subrev_u32 v{t2}, 2, v{t0}
        v_max_u32 v{t2}, 16, v{t2}
        v_min_u32 v{t0}, v{t0}, v{t2}
        v_mul_u32_u24 v{t1}, 3456, v{t1}
        v_lshl_add_u32 v{vW[k]}, v{t0}, 4, v{t1}
        ''')
        wi(0, k); wi(0, k+5)

    def issue(st):
        sl = st % 3
        a(f's_add_u32 s{sXo}, s{sXo}, 128\ns_add_u32 s{sWo}, s{sWo}, {64*3456}')
        if st in (3, 6):
            a(f'''
            s_cmp_eq_u32 s{sOff}, {9-st}
            s_cselect_b32 s69, {9*128}, 0
            s_cselect_b32 s70, {9*64*3456}, 0
            s_sub_u32 s{sXo}, s{sXo}, s69
            s_sub_u32 s{sWo}, s{sWo}, s70
            ''')
        for i in range(10):
            if i < 8: xi(sl, i)
            wi(sl, i)
    issue(1)
    stamp(a, 110, ST)
    a('s_waitcnt vmcnt(18)\ns_barrier')
    stamp(a, 1, ST); stamp(a, 101, ST)
    if after_first_wait:
        after_first_wait()
    issue(2)
    for st in range(1, 9):
        a(f's_waitcnt vmcnt({18 if st < 8 else 0})')
        if st in (2, 4, 6, 8): stamp(a, 110 + st//2, ST)
        a('s_barrier')
        stamp(a, 101 + st, ST)
        if st + 2 <= 8:
            issue(st + 2)


def gemm_compute(a, role, ST):
    ra = RegAlloc(2, 240)
    qk = role == 'qk'
    vXa = [[ra.get() for _ in range(4)] for _ in range(2)]
    vWa = [ra.get() for _ in range(3)]
    t0, t1, t2, t3 = [ra.get() for _ in range(4)]
    fX = [[ra.get(4, 4) for _ in range(2)] for _ in range(2)]
    fW = [[ra.get(4, 4) for _ in range(3)] for _ in range(2)]
    acc = [ra.get(16, 4) for _ in range(5)]
    va = [ra.get() for _ in range(4)]
    a(f'''
    s_lshr_b32 s69, s3, 1
    s_and_b32 s70, s3, 1
    v_and_b32 v{t0}, 31, v1
    v_lshrrev_b32 v{t1}, 5, v1
    v_bfe_u32 v{t2}, v1, 1, 3
    v_xor_b32 v{t2}, v{t2}, v{t1}
    s_lshl_b32 s71, s3, 12
    v_lshlrev_b32 v{t0}, 7, v{t0}
    v_lshl_add_u32 v{t0}, v{t2}, 4, v{t0}
    v_add_u32 v{vXa[0][0]}, s71, v{t0}
    v_xor_b32 v{vXa[0][1]}, 32, v{vXa[0][0]}
    v_xor_b32 v{vXa[0][2]}, 64, v{vXa[0][0]}
    v_xor_b32 v{vXa[0][3]}, 0x60, v{vXa[0][0]}
    v_xor_b32 v{vXa[1][0]}, 0x1000, v{vXa[0][0]}
    v_xor_b32 v{vXa[1][1]}, 0x1000, v{vXa[0][1]}
    v_xor_b32 v{vXa[1][2]}, 0x1000, v{vXa[0][2]}
    v_xor_b32 v{vXa[1][3]}, 0x1000, v{vXa[0][3]}
    v_bfe_u32 v{t0}, v1, 2, 2
    v_lshl_add_u32 v{t0}, v{t1}, 3, v{t0}
    v_mul_u32_u24 v{t0}, 320, v{t0}
    v_add_u32 v{t0}, {WB}, v{t0}
    v_and_b32 v{t2}, 3, v1
    v_bfe_u32 v{t3}, v1, 4, 1
    v_lshl_add_u32 v{t1}, v{t2}, 3, v{t0}
    v_lshl_add_u32 v{t0}, v{t3}, 5, v{t1}
    ''')
    if qk:
        a(f'''
        s_cmp_eq_u32 s70, 0
        s_cselect_b32 s71, 256, 0
        s_cselect_b32 s78, 0, 112
        s_cselect_b32 s79, 40, 184
        v_mul_u32_u24 v{vWa[0]}, s71, v{t3}
        v_add3_u32 v{vWa[0]}, v{vWa[0]}, v{t0}, s78
        v_add_u32 v{vWa[1]}, s79, v{t0}
        v_lshl_add_u32 v{t2}, v{t2}, 6, 32
        v_xor_b32 v{t3}, 1, v{t3}
        v_mul_u32_u24 v{t2}, v{t2}, v{t3}
        v_add_u32 v{vWa[2]}, v{t2}, v{t1}
        ''')
        wsel = [(0, 0), (1, 0), (2, 0)]
    else:
        a(f'''
        s_lshl_b32 s71, s70, 7
        v_add_u32 v{vWa[0]}, s71, v{t0}
        v_lshlrev_b32 v{t3}, 5, v{t3}
        v_sub_u32 v{vWa[2]}, v{t1}, v{t3}
        ''')
        wsel = [(0, 0), (0, 64), (2, 288)]
    ws = f's[{SRD_WS}:{SRD_WS+3}]'
    if qk:
        a(f'''
        v_lshlrev_b32 v{va[0]}, 4, v1
        s_lshl_b32 s71, s3, 10
        v_add_u32 v{va[0]}, s71, v{va[0]}
        v_xor_b32 v{va[2]}, 0x400, v{va[0]}
        v_lshrrev_b32 v{t1}, 5, v1
        v_and_b32 v{t2}, 31, v1
        v_lshlrev_b32 v{t1}, 10, v{t1}
        v_lshl_add_u32 v{t1}, v{t2}, 3, v{t1}
        s_lshl_b32 s71, s69, 8
        s_lshl_b32 s78, s70, 2
        s_add_u32 s71, s71, s78
        s_add_u32 s71, s71, {STG}
        v_add_u32 v{va[1]}, s71, v{t1}
        s_cmp_eq_u32 s70, 0
        s_cselect_b32 s64, 0, 3
        s_cselect_b32 s65, 7, 4
        s_cselect_b32 s66, 1, 5
        s_cselect_b32 s67, 2, 6
        s_mul_i32 s64, s64, s74
        s_mul_i32 s65, s65, s74
        s_mul_i32 s66, s66, s74
        s_mul_i32 s67, s67, s74
        s_add_u32 s64, s64, s73
        s_add_u32 s65, s65, s73
        s_add_u32 s66, s66, s73
        s_add_u32 s67, s67, s73
        ''')
    else:
        a(f'''
        v_and_b32 v{t0}, 31, v1
        v_lshrrev_b32 v{t1}, 5, v1
        v_mul_u32_u24 v{t1}, 304, v{t1}
        s_mul_i32 s71, s3, 1216
        s_add_u32 s71, s71, {STG}
        v_add_u32 v{t1}, s71, v{t1}
        s_lshl_b32 s71, s70, 6
        s_mul_i32 s64, s70, -2432
        s_add_u32 s64, s64, 1216
        ''')
        for f in range(3):
            a(f'''
            v_add_u32 v{t2}, {32*f if f < 2 else 128}, v{t0}
            {f'v_add_u32 v{t2}, s71, v{t2}' if f < 2 else ''}
            v_mul_u32_u24 v{t3}, 57, v{t2}
            v_lshrrev_b32 v{t3}, 10, v{t3}
            v_mul_u32_u24 v{t3}, {4864 - 288}, v{t3}
            v_lshl_add_u32 v{t2}, v{t2}, 4, v{t1}
            v_add_u32 v{va[f]}, v{t2}, v{t3}
            ''')
        a(f'''
        v_subrev_u32 v{t2}, 16, v{t0}
        v_mul_u32_u24 v{t2}, 4864, v{t2}
        v_add_u32 v{t2}, v{t2}, v{t1}
        v_add_u32 v{t2}, {18*16}, v{t2}
        v_cmp_le_u32 s[76:77], 16, v{t0}
        v_cmp_le_u32 s[78:79], 24, v{t0}
        v_mov_b32 v{t3}, 0x100000
        v_cndmask_b32 v{va[2]}, v{va[2]}, v{t2}, s[76:77]
        v_cndmask_b32 v{va[2]}, v{va[2]}, v{t3}, s[78:79]
        v_mov_b32 v{t3}, 0x3f803f80
        ''')

    q = []

    def reads(g):
        st, ks = divmod(g, 4)
        sl = st % 3; b = g & 1
        def X(z): return [(f'ds_read_b128 {v(fX[b][z],4)}, v{vXa[z][ks]} offset:{XB + sl*XS}', (g, 'x', z))]
        def W(f):
            r, o = wsel[f]
            return [(f'ds_read_b64_tr_b16 {v(fW[b][f]+2*u,2)}, v{vWa[r]} offset:{sl*WS_+(16*ks+4*u)*320+o}', (g, f, u)) for u in range(2)]
        return X(0) + W(0) + X(1) + W(1) + W(2)

    def issue(x):
        a(x[0]); q.append(x[1])

    def wait(tag):
        if tag in q:
            i = q.index(tag); n = len(q) - 1 - i
            del q[:i+1]
            a(f's_waitcnt lgkmcnt({n})')
    a('s_barrier')
    stamp(a, 1, ST)
    for x in reads(0):
        issue(x)
    plan = [(0, 0, 0, (0, 1)), (1, 0, 1, ('x', 1)), (2, 1, 0, (1, 1)), (3, 1, 1, None), (4, 2, 0, (2, 1))]
    for g in range(36):
        b = g & 1
        if g % 4 == 3 and g < 35:
            wait((g, 2, 1))
            a('s_barrier')
        nx = reads(g+1) if g < 35 else []
        cut = [2, 4, 6, 8, 8]
        k = 0
        for n, (ai, f, z, tag) in enumerate(plan):
            if tag: wait((g,) + tag)
            A, B = (fW[b][f], fX[b][z]) if qk else (fX[b][z], fW[b][f])
            c = '0' if g == 0 else v(acc[ai], 16)
            a(f'v_mfma_f32_32x32x16_bf16 {v(acc[ai],16)}, {v(A,4)}, {v(B,4)}, {c}')
            while k < min(cut[n], len(nx)):
                issue(nx[k]); k += 1
    stamp(a, 2, ST)
    pk = [fW[0][0], fW[0][1]]
    a('s_nop 7')
    if qk:
        for ai in range(4):
            f, z = ai >> 1, ai & 1
            for hb in range(2):
                r = acc[ai] + 8*hb
                d = pk[hb]
                for j in range(4):
                    a(f'v_pk_mul_f32 {v(r+2*j,2)}, {v(r+2*j,2)}, s[76:77]')
                for j in range(4):
                    a(f'v_cvt_pk_bf16_f32 v{d+j}, v{r+2*j}, v{r+2*j+1}')
                a(f'buffer_store_dwordx4 {v(d,4)}, v{va[2*z]}, {ws}, s{64+2*f+hb} offen{SC}')
        r = acc[4]
        for j in range(4):
            a(f'v_pk_mul_f32 {v(r+2*j,2)}, {v(r+2*j,2)}, s[76:77]')
        for e in range(4):
            a(f'v_cvt_pk_bf16_f32 v{r+8+e}, v{r+2*e}, v{r+2*e+1}')
        for e in range(4):
            a(f'ds_write_b32 v{va[1]}, v{r+8+e} offset:{((e>>1)*4 + (e&1))*512}')
    else:
        for ai in range(5):
            f, z = ai >> 1, ai & 1
            if z == 1:
                a(f'v_add_u32 v{va[f]}, s64, v{va[f]}')
            for m in range(2):
                r = acc[ai] + 8*m
                d = pk[m]
                for j in range(4):
                    a(f'v_cvt_pk_bf16_f32 v{d+j}, v{r+2*j}, v{r+2*j+1}')
                if ai == 4:
                    for j in range(4):
                        a(f'v_cndmask_b32 v{d+j}, v{d+j}, v{t3}, s[76:77]')
                a(f'ds_write_b128 v{va[f]}, {v(d,4)} offset:{608*m}')
    a('s_waitcnt lgkmcnt(0)')


def gemm_scalars(a):
    sc = hexf(DH ** -0.5 * LOG2E)
    a(f'''
    s_and_b32 s70, s63, 3
    s_lshl_b32 s70, s70, 3
    s_lshr_b32 s71, s62, 1
    s_mul_i32 s71, s71, {KV_CHUNK}
    s_add_u32 s71, s71, {WS_KV}
    s_and_b32 s72, s62, 1
    s_lshl_b32 s73, s72, 12
    s_add_u32 s73, s73, s71
    s_mul_i32 s79, s72, 4864
    s_add_u32 s79, s79, s71
    s_add_u32 s79, s79, 9216
    s_lshl_b32 s75, s72, 9
    s_add_u32 s75, s75, s71
    s_add_u32 s75, s75, 8192
    s_cmp_ge_u32 s63, 8
    s_cselect_b32 s73, s79, s73
    s_lshl_b32 s74, s62, 12
    s_add_u32 s74, s74, {WS_QM}
    s_lshl_b32 s76, s62, 9
    s_add_u32 s76, s76, {WS_QT}
    s_mov_b32 s78, {KV_HEAD}
    s_cmp_lt_u32 s63, 4
    s_cselect_b32 s73, s74, s73
    s_cselect_b32 s75, s76, s75
    s_cselect_b32 s74, 65536, s78
    s_cselect_b32 s72, 8192, s78
    s_cselect_b32 s76, {sc}, 1.0
    s_mov_b32 s77, s76
    s_mul_i32 s78, s70, s74
    s_add_u32 s73, s73, s78
    s_mul_i32 s78, s70, s72
    s_add_u32 s75, s75, s78
    s_mov_b32 s82, s73
    s_mov_b32 s83, s75
    s_mov_b32 s90, s72
    ''')


def gemm_flush(a):
    ws = f's[{SRD_WS}:{SRD_WS+3}]'
    t0, t1, t2, d = 200, 201, 202, 204
    Lv, Le = a.newlabel('flv'), a.newlabel('fle')
    a(f'''
    s_cmp_ge_u32 s63, 8
    s_cbranch_scc1 {Lv}
    s_cmp_lt_u32 s3, 4
    s_cbranch_scc1 {Le}
    s_and_b32 s69, s3, 1
    s_lshl_b32 s70, s69, 11
    s_add_u32 s70, s70, {STG}
    v_lshl_add_u32 v{t0}, v1, 4, s70
    ds_read_b128 {v(d,4)}, v{t0}
    ds_read_b128 {v(d+4,4)}, v{t0} offset:1024
    v_lshrrev_b32 v{t1}, 5, v1
    v_and_b32 v{t2}, 31, v1
    v_mul_lo_u32 v{t1}, v{t1}, s90
    v_lshl_add_u32 v{t1}, v{t2}, 4, v{t1}
    s_lshl_b32 s69, s69, 2
    s_mul_i32 s69, s69, s90
    s_add_u32 s69, s69, s83
    s_lshl_b32 s70, s90, 1
    s_add_u32 s70, s70, s69
    s_waitcnt lgkmcnt(1)
    buffer_store_dwordx4 {v(d,4)}, v{t1}, {ws}, s69 offen{SC}
    s_waitcnt lgkmcnt(0)
    buffer_store_dwordx4 {v(d+4,4)}, v{t1}, {ws}, s70 offen{SC}
    s_branch {Le}
    ''')
    a.label(Lv)
    a(f'''
    v_lshlrev_b32 v{t0}, 4, v0
    v_add_u32 v{t1}, {STG}, v{t0}
    s_mov_b32 s69, {KV_HEAD - 4864}
    ''')
    for i in range(7):
        a(f'ds_read_b128 {v(d+4*i,4)}, v{t1} offset:{6144*i}')
    for i in range(7):
        a(f'''
        v_add_u32 v{t1}, {384*i}, v0
        v_mul_u32_u24 v{t2}, 1725, v{t1}
        v_lshrrev_b32 v{t2}, 19, v{t2}
        v_mul_lo_u32 v{t2}, v{t2}, s69
        v_lshl_add_u32 v{t1}, v{t1}, 4, v{t2}
        ''')
        if i == 6:
            a(f's_cmp_ge_u32 s3, 2\ns_cbranch_scc1 {Le}')
        a(f's_waitcnt lgkmcnt({6-i})')
        a(f'buffer_store_dwordx4 {v(d+4*i,4)}, v{t1}, {ws}, s82 offen{SC}')
    a.label(Le)


def attn_setup(a):
    a(f'''
    s_lshl_b32 s62, s{sXCD}, 2
    s_lshr_b32 s63, s{sIDX}, 3
    s_add_u32 s62, s62, s63
    s_and_b32 s63, s{sIDX}, 7
    ''')


QSTAGE = 153728
VOTE = 163836


class AttnRegs:
    def __init__(self):
        ra = RegAlloc(2, 250)
        self.vKa, self.vTa, self.vVa = ra.get(), ra.get(), ra.get()
        self.t = [ra.get() for _ in range(7)]
        self.Qm = [ra.get(4, 4) for _ in range(2)]
        self.Qt = [[ra.get(2, 2) for _ in range(4)] for _ in range(2)]
        self.Km = [ra.get(4, 4), ra.get(4, 4)]
        self.V0 = [ra.get(4, 4), ra.get(4, 4)]
        self.V1 = [ra.get(4, 4), ra.get(4, 4)]
        self.Kt = [ra.get(2, 2), ra.get(2, 2)]
        self.T = ra.get(4, 2)
        self.P = ra.get(8, 4)
        self.S = [ra.get(16, 4), ra.get(16, 4)]
        self.O = [ra.get(16, 4), ra.get(16, 4)]
        self.NM = [ra.get(16, 4), ra.get(16, 4)]
        self.hi = ra.hi


def attn_phase(a, R, ST):
    t = R.t
    ws = f's[{SRD_WS}:{SRD_WS+3}]'
    sC, sFLAG, sMASK = 67, 68, 80
    a(f'''
    s_movk_i32 s{sMASK}, {(1 << 1) | (1 << 6)}
    v_lshlrev_b32 v{R.vKa}, 4, v1
    s_lshl_b32 s64, s3, 11
    s_add_u32 s64, s64, {QSTAGE}
    v_add_u32 v{t[1]}, s64, v{R.vKa}
    v_and_b32 v{t[0]}, 31, v1
    s_lshl_b32 s64, s3, 8
    s_add_u32 s64, s64, {QSTAGE + 8192}
    v_lshl_add_u32 v{t[2]}, v{t[0]}, 3, s64
    ds_read_b128 {v(R.Qm[0],4)}, v{t[1]}
    ds_read_b128 {v(R.Qm[1],4)}, v{t[1]} offset:1024
    ds_read_b64 {v(R.T,2)}, v{t[2]}
    v_lshlrev_b32 v{R.vTa}, 3, v1
    v_add_u32 v{R.vTa}, 8192, v{R.vTa}
    v_lshrrev_b32 v{t[1]}, 5, v1
    v_mul_u32_u24 v{t[1]}, 304, v{t[1]}
    v_cmp_lt_u32 s[72:73], 18, v{t[0]}
    v_cmp_gt_u32 s[74:75], 32, v1
    v_lshl_add_u32 v{R.vVa}, v{t[0]}, 4, v{t[1]}
    v_add_u32 v{R.vVa}, 9216, v{R.vVa}
    v_mov_b32 v{t[2]}, 0x100000
    v_cndmask_b32 v{R.vVa}, v{R.vVa}, v{t[2]}, s[72:73]
    s_mov_b32 s{sFLAG}, 0
    ''')
    for z in range(2):
        for j in range(16):
            a(f'v_mov_b32 v{R.NM[z]+j}, 0')
    a('s_waitcnt lgkmcnt(0)')
    for z in range(2):
        q = R.T + z
        a(f'''
        v_cndmask_b32 v{R.Qt[z][0]}, 0, v{q}, s[74:75]
        v_mov_b32 v{R.Qt[z][0]+1}, 0
        v_mov_b32 v{R.Qt[z][1]}, 0
        v_cndmask_b32 v{R.Qt[z][1]+1}, 0, v{q}, s[74:75]
        v_cndmask_b32 v{R.Qt[z][2]}, v{q}, 0, s[74:75]
        v_mov_b32 v{R.Qt[z][2]+1}, 0
        v_mov_b32 v{R.Qt[z][3]}, 0
        v_cndmask_b32 v{R.Qt[z][3]+1}, v{q}, 0, s[74:75]
        ''')
    stamp(a, 5, ST)
    Lrun, Lloop, Lredo, Ldone = a.newlabel('arun'), a.newlabel('aloop'), a.newlabel('aredo'), a.newlabel('adone')
    Lout = a.newlabel('aout')
    a.label(Lrun)

    def ldK(tau): return f'ds_read_b128 {v(R.Km[tau&1],4)}, v{R.vKa} offset:{(tau>>3)*KV_CHUNK + (tau&7)*1024}'
    def ldT(g): return f'ds_read_b64 {v(R.Kt[g&1],2)}, v{R.vTa} offset:{(g>>1)*KV_CHUNK + (g&1)*512}'
    def ldV(tau, m): return f'ds_read_b128 {v((R.V1 if m else R.V0)[tau&1],4)}, v{R.vVa} offset:{(tau>>3)*KV_CHUNK + (tau&7)*1216 + m*608}'
    def mA(tau, z): return f'v_mfma_f32_32x32x16_bf16 {v(R.S[z],16)}, {v(R.Km[tau&1],4)}, {v(R.Qm[z],4)}, {v(R.NM[z],16)}'
    def mB(tau, z): return f'v_mfma_f32_32x32x8_bf16 {v(R.S[z],16)}, {v(R.Kt[(tau>>2)&1],2)}, {v(R.Qt[z][tau&3],2)}, {v(R.S[z],16)}'
    def mV(m, tau, z): return f'v_mfma_f32_32x32x16_bf16 {v(R.O[z],16)}, {v((R.V1 if m else R.V0)[tau&1],4)}, {v(R.P+4*m,4)}, {v(R.O[z],16)}'
    a(ldK(0)); a(ldT(0)); a(ldV(0, 0)); a(ldK(1)); a(ldV(0, 1)); a(ldV(1, 0))
    for z in range(2):
        for j in range(16):
            a(f'v_mov_b32 v{R.O[z]+j}, 0')
    for j in range(4):
        a(f'v_mov_b32 v{R.V1[1]+j}, 0\nv_mov_b32 v{R.P+4+j}, 0')
    a(f'v_mov_b32 v{R.T+2}, 0\nv_mov_b32 v{R.T+3}, 0\ns_mov_b32 s{sC}, 0')
    a('s_waitcnt lgkmcnt(3)')
    a(mA(0, 0)); a(mB(0, 0))
    a('s_nop 7\ns_nop 2')
    a('.p2align 6')
    a.label(Lloop)
    Lbar, Lback = a.newlabel('abar'), a.newlabel('aback')
    for sg in range(16):
        tau, z = sg >> 1, sg & 1
        tn, zn = (sg+1) >> 1, (sg+1) & 1
        tp = (sg-1) >> 1
        S = R.S[z]; Tt = R.T; P = R.P
        def e(i): a(f'v_exp_f32 v{Tt+(i&3)}, v{S+i}')
        def c(i): a(f'v_cvt_pk_bf16_f32 v{P+i}, v{Tt+((2*i)&3)}, v{Tt+((2*i)&3)+1}')
        def grp(g): e(4*g); c((2*g-1) % 8); e(4*g+1); e(4*g+2); c(2*g); e(4*g+3)
        a(mA(tn, zn))
        if z == 1: a(ldK(tau+2))
        if sg == 8: a(f's_bitcmp1_b32 s{sMASK}, s{sC}')
        if sg == 14: a(f's_add_u32 s{sC}, s{sC}, 1')
        grp(0)
        a(mB(tn, zn))
        if z == 1 and (tau & 3) == 1: a(ldT((tau >> 2) + 1))
        if sg == 8:
            a(f's_cbranch_scc1 {Lbar}')
            a.label(Lback)
        if sg == 14: a(f's_cmp_lt_u32 s{sC}, 8')
        grp(1)
        a(mV(1, tp, 1-z))
        if z == 1: a(ldV(tau+1, 1))
        grp(2)
        a(mV(0, tau, z))
        if z == 1: a(ldV(tau+2, 0))
        else: a('s_waitcnt lgkmcnt(0)')
        grp(3)
    a(f'''
    v_add_u32 v{R.vKa}, {KV_CHUNK}, v{R.vKa}
    v_add_u32 v{R.vTa}, {KV_CHUNK}, v{R.vTa}
    v_add_u32 v{R.vVa}, {KV_CHUNK}, v{R.vVa}
    s_cbranch_scc1 {Lloop}
    v_cvt_pk_bf16_f32 v{R.P+7}, v{R.T+2}, v{R.T+3}
    s_waitcnt lgkmcnt(0)
    v_subrev_u32 v{R.vKa}, {8*KV_CHUNK}, v{R.vKa}
    ''')
    a(mV(1, 7, 1))
    a(f'''
    v_subrev_u32 v{R.vTa}, {8*KV_CHUNK}, v{R.vTa}
    v_subrev_u32 v{R.vVa}, {8*KV_CHUNK}, v{R.vVa}
    s_mov_b32 s69, {hexf(2.0**-64)}
    s_mov_b32 s76, {hexf(2.0**64)}
    s_mov_b32 s77, {hexf(2.0**126)}
    s_mov_b64 s[78:79], 0
    ''')
    stamp(a, 6, ST)
    for z in range(2):
        O = R.O[z]; l = t[z]
        a(f'''
        v_mov_b32 v{l}, v{O+10}
        v_mov_b32 v{t[4]}, v{O+10}
        v_max3_f32 v{t[2]}, abs(v{O}), abs(v{O+1}), abs(v{O+2})
        v_max3_f32 v{t[3]}, abs(v{O+3}), abs(v{O+4}), abs(v{O+5})
        v_permlane32_swap_b32 v{l}, v{t[4]}
        v_max3_f32 v{t[2]}, v{t[2]}, abs(v{O+6}), abs(v{O+7})
        v_max3_f32 v{t[3]}, v{t[3]}, abs(v{O+8}), abs(v{O+9})
        v_max_f32 v{t[2]}, v{t[2]}, v{t[3]}
        v_cmp_nle_f32 s[70:71], s69, v{l}
        v_cmp_nge_f32 s[72:73], s76, v{l}
        v_cmp_nge_f32 vcc, s77, v{t[2]}
        s_or_b64 s[78:79], s[78:79], s[70:71]
        s_or_b64 s[78:79], s[78:79], s[72:73]
        s_or_b64 s[78:79], s[78:79], vcc
        ''')
    a(f'''
    s_cmp_eq_u64 s[78:79], 0
    s_cbranch_scc1 {Ldone}
    v_mov_b32 v{t[2]}, {VOTE}
    v_mov_b32 v{t[3]}, 1
    ds_write_b32 v{t[2]}, v{t[3]}
    ''')
    a.label(Ldone)
    a(f'''
    v_rcp_f32 v{t[0]}, v{t[0]}
    v_rcp_f32 v{t[1]}, v{t[1]}
    s_lshl_b32 s64, s63, 2
    s_add_u32 s64, s64, s3
    s_mul_i32 s65, s64, {4*18432}
    s_lshl_b32 s66, s62, 9
    s_add_u32 s65, s65, s66
    s_add_u32 s65, s65, {WS_O}
    s_lshl_b32 s64, s64, 13
    s_lshl_b32 s66, s62, 8
    s_add_u32 s64, s64, s66
    s_add_u32 s64, s64, {WS_OT}
    s_add_u32 s66, s65, {2*18432}
    v_bfe_u32 v{t[4]}, v1, 4, 1
    v_and_b32 v{t[2]}, 15, v1
    v_mul_u32_u24 v{t[4]}, 18432, v{t[4]}
    v_lshl_add_u32 v{t[4]}, v{t[2]}, 4, v{t[4]}
    v_lshrrev_b32 v{t[2]}, 5, v1
    v_lshl_add_u32 v{t[2]}, v{t[2]}, 8, v{t[4]}
    v_lshlrev_b32 v{t[3]}, 2, v1
    ''')
    for z in range(2):
        O = R.O[z]; d = R.S[z]
        for j in range(10):
            a(f'v_mul_f32 v{O+j}, v{t[z]}, v{O+j}')
        for j in (4, 0, 1, 2, 3):
            a(f'v_cvt_pk_bf16_f32 v{d+j}, v{O+2*j}, v{O+2*j+1}')
        a(f'buffer_store_dwordx4 {v(d,4)}, v{t[2]}, {ws}, s{65+z} offen{SC}')
    a(f'''
    v_permlane32_swap_b32 v{R.S[0]+4}, v{R.S[1]+4}
    buffer_store_dword v{R.S[0]+4}, v{t[3]}, {ws}, s64 offen{SC}
    ''')
    stamp(a, 7, ST)
    a(f'''
    v_mov_b32 v{t[2]}, {VOTE}
    s_waitcnt vmcnt(0) lgkmcnt(0)
    s_barrier
    s_cmp_lg_u32 s{sFLAG}, 0
    s_cbranch_scc1 {Lout}
    ds_read_b32 v{t[3]}, v{t[2]}
    s_waitcnt lgkmcnt(0)
    v_readfirstlane_b32 s69, v{t[3]}
    s_cmp_lg_u32 s69, 0
    s_cbranch_scc1 {Lredo}
    ''')
    a.label(Lout)

    def redo():
        a.label(Lbar)
        a(f's_waitcnt vmcnt(0)\ns_barrier\ns_branch {Lback}')
        Lm = a.newlabel('amax')
        a.label(Lredo)
        a(f'''
        s_barrier
        v_mov_b32 v{t[0]}, 0xff800000
        v_mov_b32 v{t[1]}, 0xff800000
        s_mov_b32 s{sC}, 0
        ''')
        a.label(Lm)
        for tau in range(8):
            a(ldK(tau))
            if (tau & 3) == 0:
                a(ldT(tau >> 2))
            a('s_waitcnt lgkmcnt(0)')
            for z in range(2):
                S = R.S[z]
                a(f'v_mfma_f32_32x32x16_bf16 {v(S,16)}, {v(R.Km[tau&1],4)}, {v(R.Qm[z],4)}, 0')
                a(f'v_mfma_f32_32x32x8_bf16 {v(S,16)}, {v(R.Kt[tau>>2],2)}, {v(R.Qt[z][tau&3],2)}, {v(S,16)}')
            a('s_nop 11')
            for z in range(2):
                S = R.S[z]
                for j in range(8):
                    a(f'v_max3_f32 v{t[z]}, v{t[z]}, v{S+2*j}, v{S+2*j+1}')
        a(f'''
        v_add_u32 v{R.vKa}, {KV_CHUNK}, v{R.vKa}
        v_add_u32 v{R.vTa}, {KV_CHUNK}, v{R.vTa}
        s_add_u32 s{sC}, s{sC}, 1
        s_cmp_lt_u32 s{sC}, 8
        s_cbranch_scc1 {Lm}
        v_mov_b32 v{t[2]}, v{t[0]}
        v_mov_b32 v{t[3]}, v{t[1]}
        v_subrev_u32 v{R.vKa}, {8*KV_CHUNK}, v{R.vKa}
        v_subrev_u32 v{R.vTa}, {8*KV_CHUNK}, v{R.vTa}
        v_permlane32_swap_b32 v{t[0]}, v{t[2]}
        v_permlane32_swap_b32 v{t[1]}, v{t[3]}
        s_mov_b32 s{sFLAG}, 16
        s_mov_b32 s{sMASK}, 0
        v_max_f32 v{t[0]}, v{t[0]}, v{t[2]}
        v_max_f32 v{t[1]}, v{t[1]}, v{t[3]}
        ''')
        for z in range(2):
            for j in range(16):
                a(f'v_sub_f32 v{R.NM[z]+j}, 0, v{t[z]}')
        a(f's_branch {Lrun}')
    return redo


def kv_first(a, vL):
    a(f'''
    s_and_b32 s64, s3, 1
    s_lshl_b32 s65, s62, 16
    s_lshl_b32 s66, s63, 13
    s_add_u32 s65, s65, s66
    s_lshl_b32 s66, s64, 12
    s_add_u32 s65, s65, s66
    s_add_u32 m0, s66, {QSTAGE}
    s_add_u32 s65, s65, {WS_QM}
    s_mul_i32 s67, s62, {KV_HEAD}
    s_add_u32 s67, s67, s66
    s_add_u32 s67, s67, {WS_KV}
    ''')
    for i in range(4):
        a(dma(SRD_WS, vL, 's65', 1024*i))
    a(f'''
    s_lshl_b32 s65, s62, 13
    s_lshl_b32 s68, s63, 10
    s_add_u32 s65, s65, s68
    s_mov_b32 m0, {QSTAGE + 8192}
    s_add_u32 s65, s65, {WS_QT}
    ''')
    a(dma(SRD_WS, vL, 's65'))
    for k in range(5):
        a(f's_add_u32 m0, s66, {8192*k}')
        a(f's_add_u32 s67, s67, 8192' if k else 's_nop 0')
        for i in range(4):
            a(dma(SRD_WS, vL, 's67', 1024*i))


def kv_rest(a, vL, first=40):
    a(f'''
    s_and_b32 s66, s3, 3
    s_lshl_b32 s66, s66, 12
    s_add_u32 s66, s66, {first*1024}
    s_mul_i32 s67, s62, {KV_HEAD}
    s_add_u32 s67, s67, s66
    s_add_u32 s67, s67, {WS_KV}
    ''')
    L = a.newlabel('kvlast')
    ng = (148 - first) // 4
    for k in range((ng + 3) // 4):
        if 4*k + 4 > ng:
            a(f's_cmp_ge_u32 s3, {4 + ng - 4*k}\ns_cbranch_scc1 {L}')
        a(f's_add_u32 m0, s66, {16384*k}')
        a(f's_add_u32 s67, s67, 16384' if k else 's_nop 0')
        for i in range(4):
            a(dma(SRD_WS, vL, 's67', 1024*i))
    a.label(L)


XCH = 110592


class OutRegs:
    def __init__(self):
        ra = RegAlloc(2, 250)
        self.t = [ra.get() for _ in range(6)]
        self.vM = [ra.get() for _ in range(3)]
        self.vT = [ra.get() for _ in range(3)]
        self.vAe, self.vAo = ra.get(), ra.get()
        self.Of = [ra.get(4, 4) for _ in range(9)]
        self.fA = [[ra.get(4, 4) for _ in range(6)] for _ in range(2)]
        self.acc = [ra.get(4, 4) for _ in range(6)]


def out_setup(a):
    a(f'''
    s_lshl_b32 s62, s{sXCD}, 2
    s_and_b32 s63, s{sIDX}, 3
    s_add_u32 s62, s62, s63
    s_lshr_b32 s63, s{sIDX}, 2
    ''')


def out_wo_addr(a, R):
    t = R.t
    for i in range(3):
        a(f'''
        v_add_u32 v{t[0]}, {64*i}, v1
        v_mul_u32_u24 v{t[1]}, 171, v{t[0]}
        v_lshrrev_b32 v{t[1]}, 11, v{t[1]}
        v_mul_u32_u24 v{t[2]}, 12, v{t[1]}
        v_sub_u32 v{t[0]}, v{t[0]}, v{t[2]}
        v_lshrrev_b32 v{t[2]}, 3, v{t[1]}
        v_lshlrev_b32 v{t[3]}, 1, v{t[2]}
        v_xor_b32 v{t[0]}, v{t[0]}, v{t[3]}
        v_lshlrev_b32 v{t[0]}, 4, v{t[0]}
        v_and_b32 v{t[3]}, 3, v{t[1]}
        v_bfe_u32 v{t[4]}, v{t[1]}, 2, 1
        v_lshl_add_u32 v{t[3]}, v{t[4]}, 3, v{t[3]}
        v_lshl_add_u32 v{t[3]}, v{t[2]}, 2, v{t[3]}
        v_mul_u32_u24 v{t[3]}, 1152, v{t[3]}
        v_add_u32 v{R.vM[i]}, v{t[3]}, v{t[0]}
        v_lshrrev_b32 v{t[3]}, 1, v{t[1]}
        v_mul_u32_u24 v{t[3]}, 18, v{t[3]}
        v_and_b32 v{t[4]}, 1, v{t[1]}
        v_add3_u32 v{t[3]}, v{t[3]}, v{t[4]}, 16
        v_mul_u32_u24 v{t[3]}, 1152, v{t[3]}
        v_add_u32 v{R.vT[i]}, v{t[3]}, v{t[0]}
        ''')


def out_issue_wo(a, R):
    a(f'''
    s_and_b32 s67, s3, 3
    s_mul_i32 s64, s63, 192
    s_mul_i32 s65, s67, {18*1152}
    s_add_u32 s65, s65, s64
    s_mul_i32 s66, s67, 3072
    ''')
    for k in range(8):
        for i in range(3):
            a(f's_add_u32 m0, s66, {k*4*3072 + i*1024}')
            a('s_nop 0' if (i or not k) else f's_add_u32 s65, s65, {4*18*1152}')
            a(dma(SRD_WO, R.vM[i], 's65'))
    a(f'''
    s_mul_i32 s65, s67, {8*18*1152}
    s_add_u32 s65, s65, s64
    ''')
    for i in range(3):
        a(f's_add_u32 m0, s66, {32*3072 + i*1024}\ns_nop 0')
        a(dma(SRD_WO, R.vT[i], 's65'))


def out_o_addr(a, R):
    t = R.t
    a(f'''
    s_lshl_b32 s64, s62, 2
    s_and_b32 s65, s3, 3
    s_add_u32 s64, s64, s65
    s_mul_i32 s64, s64, 18432
    s_lshl_b32 s68, s62, 13
    s_lshl_b32 s65, s65, 6
    s_add_u32 s68, s68, s65
    s_add_u32 s68, s68, {WS_OT}
    s_add_u32 s69, s68, 4096
    s_lshr_b32 s65, s3, 2
    s_mul_i32 s65, s65, 9216
    s_add_u32 s64, s64, s65
    s_add_u32 s64, s64, {WS_O}
    s_add_u32 s65, s64, 4096
    s_add_u32 s66, s64, 8192
    v_lshlrev_b32 v{t[5]}, 4, v1
    v_lshrrev_b32 v{t[4]}, 4, v1
    v_and_b32 v{t[3]}, 15, v1
    v_lshlrev_b32 v{t[4]}, 10, v{t[4]}
    v_lshl_add_u32 v{t[4]}, v{t[3]}, 2, v{t[4]}
    ''')


def out_issue_o(a, R):
    t = R.t
    ws = f's[{SRD_WS}:{SRD_WS+3}]'
    L1, Lj = a.newlabel('otail'), a.newlabel('oj')
    for k in range(7):
        a(f'buffer_load_dwordx4 {v(R.Of[k],4)}, v{t[5]}, {ws}, s{64 + k//4} offen offset:{(k%4)*1024}{SC}')
    a(f's_cmp_gt_u32 s3, 3\ns_cbranch_scc1 {L1}')
    for k in (7, 8):
        a(f'buffer_load_dwordx4 {v(R.Of[k],4)}, v{t[5]}, {ws}, s{64 + k//4} offen offset:{(k%4)*1024}{SC}')
    a(f's_branch {Lj}')
    a.label(L1)
    for k in (7, 8):
        for e in range(4):
            a(f'buffer_load_dword v{R.Of[k]+e}, v{t[4]}, {ws}, s{61+k} offen offset:{256*e}{SC}')
    a.label(Lj)


def out_phase(a, R, ST):
    t = R.t
    a(f'''
    v_lshrrev_b32 v{t[0]}, 4, v1
    v_bfe_u32 v{t[1]}, v1, 2, 2
    v_lshl_add_u32 v{t[1]}, v{t[0]}, 3, v{t[1]}
    v_mul_u32_u24 v{t[1]}, 192, v{t[1]}
    v_and_b32 v{t[2]}, 3, v1
    v_lshl_add_u32 v{t[1]}, v{t[2]}, 3, v{t[1]}
    s_lshr_b32 s67, s3, 2
    s_mul_i32 s67, s67, 55296
    v_add_u32 v{t[1]}, s67, v{t[1]}
    v_and_b32 v{t[2]}, 1, v{t[0]}
    v_lshlrev_b32 v{t[2]}, 5, v{t[2]}
    v_add_u32 v{R.vAe}, v{t[1]}, v{t[2]}
    v_sub_u32 v{R.vAo}, v{t[1]}, v{t[2]}
    ''')
    stamp(a, 9, ST)

    def reads(k):
        L = []
        for f in range(6):
            for u in range(2):
                L.append(f'ds_read_b64_tr_b16 {v(R.fA[k&1][f]+2*u,2)}, v{R.vAo if f&1 else R.vAe} offset:{k*6144+u*768+f*32}')
        return L
    for x in reads(0):
        a(x)
    for k in range(9):
        mf = [f'v_mfma_f32_16x16x32_bf16 {v(R.acc[f],4)}, {v(R.fA[k&1][f],4)}, {v(R.Of[k],4)}, {v(R.acc[f],4) if k else 0}' for f in range(6)]
        a(f's_waitcnt vmcnt({max(8-k, 0) if k < 7 else 0}) lgkmcnt(0)')
        for x in interleave(mf, reads(k+1) if k < 8 else []):
            a(x)
    stamp(a, 10, ST)
    out = f's[{SRD_OUT}:{SRD_OUT+3}]'
    L1, Lj = a.newlabel('kh1'), a.newlabel('khj')
    a(f'''
    s_mul_i32 s64, s3, 3072
    s_xor_b32 s65, s3, 4
    s_mul_i32 s65, s65, 3072
    v_add_u32 v{t[0]}, {XCH}, v{t[5]}
    v_add_u32 v{t[1]}, s65, v{t[0]}
    v_add_u32 v{t[0]}, s64, v{t[0]}
    s_lshl_b32 s64, s62, 2
    s_and_b32 s65, s3, 3
    s_add_u32 s64, s64, s65
    s_mul_i32 s64, s64, {16*2304}
    s_mul_i32 s65, s63, 192
    s_add_u32 s64, s64, s65
    s_add_u32 s64, s64, 1152
    v_and_b32 v{t[2]}, 15, v1
    v_mul_u32_u24 v{t[2]}, 2304, v{t[2]}
    v_lshrrev_b32 v{t[3]}, 4, v1
    v_lshl_add_u32 v{t[2]}, v{t[3]}, 3, v{t[2]}
    s_cmp_gt_u32 s3, 3
    s_cbranch_scc1 {L1}
    ''')
    for kh in range(2):
        if kh == 1:
            a.label(L1)
        keep = [3*kh + i for i in range(3)]
        send = [3*(1-kh) + i for i in range(3)]
        for i, f in enumerate(send):
            a(f'ds_write_b128 v{t[0]}, {v(R.acc[f],4)} offset:{i*1024}')
        a('s_waitcnt lgkmcnt(0)\ns_barrier')
        for i in range(3):
            a(f'ds_read_b128 {v(R.fA[0][i],4)}, v{t[1]} offset:{i*1024}')
        for i, f in enumerate(keep):
            a(f's_waitcnt lgkmcnt({2-i})')
            for j in range(4):
                a(f'v_add_f32 v{R.acc[f]+j}, v{R.acc[f]+j}, v{R.fA[0][i]+j}')
            a(f'v_cvt_pk_bf16_f32 v{R.fA[1][i]}, v{R.acc[f]}, v{R.acc[f]+1}')
            a(f'v_cvt_pk_bf16_f32 v{R.fA[1][i]+1}, v{R.acc[f]+2}, v{R.acc[f]+3}')
            a(f'buffer_store_dwordx2 {v(R.fA[1][i],2)}, v{t[2]}, {out}, s64 offen offset:{32*f}')
        if kh == 0:
            a(f's_branch {Lj}')
    a.label(Lj)
    stamp(a, 11, ST)
```

```python
import math
from asmlib import *
from layout import *
from phases import *

PK = False
BARS = (4, 16)
BARS2 = (10,)
KROW = 272
KG_LDS = 59 * KROW
CV_K = 9280
CV_SLOT = CV_K + KG_LDS
CV_A = 16
CV_XCH = 49152
EXPS = list(range(8)) + [256, 258, 260, 262, 264] + [512, 516, 520, 768, 772, 776] + \
       [1024, 1032, 1280, 1288, 1536, 1544, 1792, 1800]
assert len(EXPS) == 27
WANT = [list(range(8)) + [1024, 1024, 1032, 1280, 1280, 1288, 1536, 1544],
        [256, 256, 258, 260, 260, 260, 262, 264] + [512, 516, 520, 768, 772, 776, 1792, 1800]]


def rowmap():
    m = [0]*32
    for h in range(2):
        for r in range(16):
            m[(r & 3) + 8*(r >> 2) + 4*h] = EXPS.index(WANT[h][r])
    return m


def cmul(d, x, y):
    if PK:
        return [f'v_pk_mul_f32 {v(d,2)}, {v(x,2)}, {v(y,2)} op_sel:[0,0] op_sel_hi:[1,0]',
                f'v_pk_fma_f32 {v(d,2)}, {v(x,2)}, {v(y,2)}, {v(d,2)} op_sel:[1,1,0] op_sel_hi:[0,1,1] neg_lo:[1,0,0]']
    return [f'v_mul_f32 v{d}, v{x}, v{y}\nv_mul_f32 v{d+1}, v{x+1}, v{y}',
            f'v_fma_f32 v{d}, -v{x+1}, v{y+1}, v{d}\nv_fmac_f32 v{d+1}, v{x}, v{y+1}']


def kgen_setup(a, R):
    t = R.t
    rm = rowmap()
    for i in range(8):
        w = sum(rm[4*i+j] << (8*j) for j in range(4))
        a(f's_mov_b32 s{70+i}, 0x{w:08x}')
    a(f'''
    v_bfe_u32 v{t[0]}, v1, 2, 3
    v_mov_b32 v{t[1]}, s70
    ''')
    for i in range(1, 8):
        a(f'''
        v_cmp_eq_u32 s[78:79], {i}, v{t[0]}
        v_mov_b32 v{t[2]}, s{70+i}
        s_nop 0
        v_cndmask_b32 v{t[1]}, v{t[1]}, v{t[2]}, s[78:79]
        ''')
    a(f'''
    v_and_b32 v{t[0]}, 3, v1
    v_lshlrev_b32 v{t[0]}, 3, v{t[0]}
    v_bfe_u32 v{t[1]}, v{t[1]}, v{t[0]}, 8
    v_mul_u32_u24 v{t[1]}, {KROW}, v{t[1]}
    v_lshrrev_b32 v{t[2]}, 5, v1
    v_lshl_add_u32 v{t[0]}, v{t[2]}, 4, s66
    v_add_u32 v{R.vA}, v{t[0]}, v{t[1]}
    v_and_b32 v{t[1]}, 31, v1
    v_mul_u32_u24 v{t[3]}, {KROW}, v{t[1]}
    v_add_u32 v{R.vB}, v{t[0]}, v{t[3]}
    v_add_u32 v{R.vB}, {27*KROW}, v{R.vB}
    v_cmp_gt_u32 s[70:71], 32, v1
    v_and_b32 v{t[3]}, 1, v1
    v_cmp_eq_u32 s[72:73], 1, v{t[3]}
    v_mov_b32 v{t[3]}, 0x01000504
    v_mov_b32 v{t[4]}, 0x05040504
    v_cndmask_b32 v{R.sel3}, v{t[3]}, v{t[4]}, s[72:73]
    v_mov_b32 v{t[3]}, 0x03020302
    v_cndmask_b32 v{R.sel1}, v{t[3]}, v{R.sel3}, s[70:71]
    v_mov_b32 v{t[3]}, 0x01000302
    v_mov_b32 v{t[4]}, 0x01000100
    v_cndmask_b32 v{R.sel2}, v{t[3]}, v{t[4]}, s[70:71]
    v_lshlrev_b32 v{t[1]}, 4, v{t[1]}
    v_lshlrev_b32 v{t[2]}, 9, v{t[2]}
    v_sub_u32 v{t[1]}, {4096-16}, v{t[1]}
    v_sub_u32 v{R.vS0}, v{t[1]}, v{t[2]}
    v_lshlrev_b32 v{t[2]}, 1, v{t[2]}
    v_subrev_u32 v{t[1]}, 2560, v{t[1]}
    v_add_u32 v{R.vS1}, v{t[1]}, v{t[2]}
    v_cmp_eq_u32 s[74:75], 0, v1
    s_add_u32 s67, s66, {CV_A - 4}
    v_add_u32 v{R.vS0}, s67, v{R.vS0}
    v_add_u32 v{R.vS1}, s67, v{R.vS1}
    v_subrev_u32 v{R.vS3}, 3072, v{R.vS0}
    v_lshrrev_b32 v{t[2]}, 5, v1
    v_mul_u32_u24 v{t[2]}, {4224 + 4 - 128}, v{t[2]}
    v_add3_u32 v{R.vZ}, v{t[2]}, v{R.vP}, s67
    ''')


class KgenRegs:
    def __init__(self):
        ra = RegAlloc(2, 250)
        self.t = [ra.get() for _ in range(6)]
        self.vA, self.vB, self.sel1, self.sel2, self.sel3 = [ra.get() for _ in range(5)]
        self.vS0, self.vS1, self.vS3, self.vP, self.vZ = [ra.get() for _ in range(5)]
        self.par = [ra.get() for _ in range(6)]
        self.ldt, self.dsk, self.dt = ra.get(), ra.get(), ra.get()
        self.z1, self.z8, self.z16, self.z256 = [ra.get(2, 2) for _ in range(4)]
        self.er, self.ar = ra.get(), ra.get()
        self.x = [ra.get(2, 2) for _ in range(4)]
        self.w = [ra.get(2, 2) for _ in range(9)]
        self.c = [ra.get(2, 2) for _ in range(4)]
        self.pk = [ra.get() for _ in range(4)]
        self.fA = [ra.get(4, 4) for _ in range(8)]
        self.fB = [ra.get(4, 4) for _ in range(8)]
        self.acc = ra.get(16, 4)
        self.o = ra.get(16, 4)
        self.ut = [ra.get() for _ in range(5)]
        self.ud = ra.get(32, 4)


def kgen_load(a, R, sCH):
    t = R.t
    a(f'''
    s_lshl_b32 s67, s{sCH}, 8
    v_add_u32 v{t[0]}, s67, v{R.vP}
    s_lshl_b32 s67, s{sCH}, 1
    v_mov_b32 v{t[1]}, s67
    ''')
    for i in range(6):
        a(f'global_load_dword v{R.par[i]}, v{t[0]}, s[{sPAR+2*i}:{sPAR+2*i+1}]')
    a(f'global_load_ushort v{R.ldt}, v{t[1]}, s[{sPAR+12}:{sPAR+13}]')
    a(f'global_load_ushort v{R.dsk}, v{t[1]}, s[{sPAR+14}:{sPAR+15}]')


def kgen_compute(a, R):
    t = R.t
    ws = f's[{SRD_WS}:{SRD_WS+3}]'
    l2hi = f32bits(LOG2E)
    import struct
    l2hi_f = struct.unpack('<f', struct.pack('<I', l2hi))[0]
    a(f'''
    v_lshlrev_b32 v{R.ldt}, 16, v{R.ldt}
    v_lshlrev_b32 v{R.dsk}, 16, v{R.dsk}
    s_mov_b32 s68, 0x{l2hi:08x}
    v_mul_f32 v{t[0]}, s68, v{R.ldt}
    v_fma_f32 v{t[1]}, v{R.ldt}, s68, -v{t[0]}
    v_exp_f32 v{t[0]}, v{t[0]}
    v_fmac_f32 v{t[1]}, {hexf(LOG2E - l2hi_f)}, v{R.ldt}
    v_mul_f32 v{t[1]}, {hexf(math.log(2.0))}, v{t[1]}
    v_fmac_f32 v{t[0]}, v{t[0]}, v{t[1]}
    v_cvt_pk_bf16_f32 v{t[0]}, v{t[0]}, v{t[0]}
    v_and_b32 v{R.dt}, 0xffff0000, v{t[0]}
    s_mov_b32 m0, s66
    s_mov_b32 s69, 0
    ''')
    def bar(k):
        if k in BARS and k in BARS2:
            a('s_barrier')
        elif k in BARS or k in BARS2:
            L = a.newlabel('kb')
            a(f's_cmp_lg_u32 s69, {0 if k in BARS else 1}\ns_cbranch_scc1 {L}\ns_barrier')
            a.label(L)
    Lp = a.newlabel('kpass')
    a.label(Lp)
    x = R.x
    a(f'''
    v_lshlrev_b32 v{R.er}, 16, v{R.par[0]}
    v_lshlrev_b32 v{R.ar}, 16, v{R.par[1]}
    v_lshlrev_b32 v{x[0]}, 16, v{R.par[2]}
    v_lshlrev_b32 v{x[0]+1}, 16, v{R.par[3]}
    v_lshlrev_b32 v{x[1]}, 16, v{R.par[4]}
    v_lshlrev_b32 v{x[1]+1}, 16, v{R.par[5]}
    v_mul_f32 v{R.er}, v{R.dt}, v{R.er}
    v_mul_f32 v{R.ar}, v{R.dt}, v{R.ar}
    v_mul_f32 v{x[0]}, v{R.dt}, v{x[0]}
    v_mul_f32 v{x[0]+1}, v{R.dt}, v{x[0]+1}
    v_mul_f32 v{R.er}, s68, v{R.er}
    v_mul_f32 v{R.ar}, 0.15915494, v{R.ar}
    ''')
    for y in cmul(R.w[0], x[0], x[1]):
        a(y)
    for z, e in ((R.z1, 1.0), (R.z8, 8.0), (R.z256, 256.0)):
        if e == 1.0:
            a(f'v_exp_f32 v{t[0]}, v{R.er}\nv_fract_f32 v{t[1]}, v{R.ar}')
        else:
            a(f'''
            v_mul_f32 v{t[0]}, {hexf(e)}, v{R.er}
            v_mul_f32 v{t[1]}, {hexf(e)}, v{R.ar}
            v_exp_f32 v{t[0]}, v{t[0]}
            v_fract_f32 v{t[1]}, v{t[1]}
            ''')
        a(f'''
        v_cos_f32 v{z}, v{t[1]}
        v_sin_f32 v{z+1}, v{t[1]}
        v_mul_f32 v{z}, v{t[0]}, v{z}
        v_mul_f32 v{z+1}, v{t[0]}, v{z+1}
        ''')
    npk = [0]

    def putA(reg, e):
        p = R.pk[npk[0] & 3]; npk[0] += 1
        return [f'v_cvt_pk_bf16_f32 v{p}, v{reg}, -v{reg+1}', f'ds_write_addtid_b32 v{p} offset:{EXPS.index(e)*KROW}']

    def putB(reg, i):
        p = R.pk[npk[0] & 3]; npk[0] += 1
        return [f'v_cvt_pk_bf16_f32 v{p}, v{reg}, v{reg+1}', f'ds_write_addtid_b32 v{p} offset:{(27+i)*KROW}']
    w = R.w
    sa = [([], (w[0], 'A', 0))]
    for j in range(1, 9):
        sa.append((cmul(w[j], w[j-1], R.z1), (w[j], 'A', j) if j < 8 else None))
    cur = {0: w[0], 2: w[2], 4: w[4], 6: w[6], 8: w[8]}
    spare = [w[1], w[3], w[5], w[7], x[0], x[1]]
    for base, js in ((256, (0, 2, 4, 6, 8)), (512, (0, 4, 8)), (768, (0, 4, 8)), (1024, (0, 8)), (1280, (0, 8)), (1536, (0, 8)), (1792, (0, 8))):
        for j in js:
            d = spare.pop(0)
            sa.append((cmul(d, cur[j], R.z256), (d, 'A', base+j)))
            spare.append(cur[j]); cur[j] = d
    c = R.c
    sb0 = [(cmul(R.z16, R.z8, R.z8), (R.z16, 'B', 2))]
    prev = R.z16
    for i in range(4, 32, 2):
        d = c[(i >> 1) & 1]
        sb0.append((cmul(d, prev, R.z16), (d, 'B', i))); prev = d
    sb1 = [([], (R.z8, 'B', 1))]
    prev = R.z8
    for i in range(3, 32, 2):
        d = c[2 + ((i >> 1) & 1)]
        sb1.append((cmul(d, prev, R.z16), (d, 'B', i))); prev = d
    a(f'v_mov_b32 v{t[0]}, 0x00003f80\nds_write_addtid_b32 v{t[0]} offset:{27*KROW}')
    ia = ib0 = ib1 = 0
    pend = []
    ngrp = 0
    while ia < len(sa) or ib0 < len(sb0) or ib1 < len(sb1):
        ngrp += 1
        bar(ngrp)
        grp = []
        if ib0 < len(sb0): grp.append(sb0[ib0]); ib0 += 1
        if ia < len(sa): grp.append(sa[ia]); ia += 1
        if ib1 < len(sb1) and ib1 <= ib0 - 1 + (1 if ib0 >= len(sb0) else 0): grp.append(sb1[ib1]); ib1 += 1
        if ia < len(sa) and ia > 9: grp.append(sa[ia]); ia += 1
        for g in grp:
            if g[0]: a(g[0][0])
        for y in pend: a(y)
        pend = []
        for g in grp:
            if g[0]: a(g[0][1])
        st = []
        for g in grp:
            if g[1]:
                reg, kind, e = g[1]
                st.append(putA(reg, e) if kind == 'A' else putB(reg, e))
        for y in st: a(y[0])
        pend = [y[1] for y in st]
    assert ngrp + 1 >= max(BARS + BARS2)
    for y in pend: a(y)
    for k in range(8):
        a(f'ds_read_b128 {v(R.fA[k],4)}, v{R.vA} offset:{32*k}')
        a(f'ds_read_b128 {v(R.fB[k],4)}, v{R.vB} offset:{32*k}')
    bar(ngrp + 1)
    for i in range(6):
        a(f'v_lshrrev_b32 v{R.par[i]}, 16, v{R.par[i]}')
    L1, Lj = a.newlabel('kacc'), a.newlabel('kj')
    a(f's_cmp_lg_u32 s69, 0\ns_cbranch_scc1 {L1}')
    for j in range(16):
        a(f'v_mov_b32 v{R.acc+j}, 0')
    a.label(L1)
    for k in range(8):
        a(f's_waitcnt lgkmcnt({min(14-2*k, 14)})')
        if k == 0: a('s_nop 0')
        a(f'v_mfma_f32_32x32x16_bf16 {v(R.acc,16)}, {v(R.fA[k],4)}, {v(R.fB[k],4)}, {v(R.acc,16)}')
    a(f'''
    s_add_u32 s69, s69, 1
    s_cmp_lt_u32 s69, 2
    s_cbranch_scc1 {Lp}
    v_cndmask_b32 v{R.dsk}, 0, v{R.dsk}, s[74:75]
    s_nop 9
    ''')
    g = R.acc; o = R.o

    def put(d, va, off):
        a(f'''
        ds_write_b128 v{va}, {v(d,4)} offset:{off + 4224 + 4}
        ds_write2_b32 v{va}, v{d}, v{d+1} offset0:{off//4} offset1:{off//4+1}
        ds_write2_b32 v{va}, v{d+2}, v{d+3} offset0:{off//4+2} offset1:{off//4+3}
        ''')
    a(f'v_add_f32 v{g}, v{g}, v{R.dsk}')
    for j in range(4):
        a(f'v_cvt_pk_bf16_f32 v{o+j}, v{g+7-2*j}, v{g+6-2*j}')
    put(o, R.vS0, 0)
    for b, r in enumerate((8, 11)):
        d = o + 4 + 4*b
        a(f'''
        v_cvt_pk_bf16_f32 v{t[0]}, v{g+r}, v{g+r+1}
        v_cvt_pk_bf16_f32 v{d}, v{g+r+2}, v{g+r+2}
        v_cvt_pk_bf16_f32 v{d+3}, v{g+r}, v{g+r}
        v_perm_b32 v{d+1}, v{d}, v{t[0]}, v{R.sel1}
        v_perm_b32 v{d+2}, v{d}, v{t[0]}, v{R.sel2}
        ''')
        put(d, R.vS1, 512*(1-b))
    d = o + 12
    a(f'''
    v_cvt_pk_bf16_f32 v{d}, v{g+15}, v{g+15}
    v_cvt_pk_bf16_f32 v{d+2}, v{g+14}, v{g+14}
    v_cvt_pk_bf16_f32 v{d+3}, v{g+14}, v{g+14}
    v_perm_b32 v{d+1}, v{d}, v{d+2}, v{R.sel3}
    v_mov_b32 v{g+4}, 0
    v_mov_b32 v{g+5}, 0
    ''')
    put(d, R.vS3, 0)
    a(f'ds_write_b32 v{R.vZ}, v{g+4} offset:4096')


def u_issue(a, t, sSL):
    a(f'''
    s_mul_i32 s70, s{sSL}, {CV_SLOT}
    s_add_u32 s70, s70, s92
    s_add_u32 s69, s93, s{sSL}
    v_lshlrev_b32 v{t}, 4, v1
    s_add_u32 m0, s70, 512
    s_lshl_b32 s69, s69, 13
    s_add_u32 s69, s69, {WS_UT}
    ''')
    for i in range(4):
        a(dma(SRD_WS, t, 's69', 1024*i))
    a(f's_add_u32 m0, s70, {4640 + 512}\ns_add_u32 s69, s69, 4096')
    for i in range(4):
        a(dma(SRD_WS, t, 's69', 1024*i))
    a(f'''
    v_lshl_add_u32 v{t+1}, v1, 3, s70
    v_mov_b32 v{t+2}, 0
    v_mov_b32 v{t+3}, 0
    ds_write_b64 v{t+1}, {v(t+2,2)}
    ds_write_b64 v{t+1}, {v(t+2,2)} offset:4640
    ''')


def ut_issue(a, t, base):
    a(f'''
    s_lshr_b32 s64, s62, 1
    s_lshl_b32 s64, s64, 6
    s_mul_i32 s64, s64, 1152
    s_and_b32 s65, s62, 1
    s_mul_i32 s65, s65, 576
    s_add_u32 s64, s64, s65
    s_sub_u32 s64, s64, 1152
    s_lshl_b32 s65, s3, 10
    ''')
    for i in range(5):
        a(f'''
        v_add_u32 v{t[0]}, {512*i}, v0
        v_mul_u32_u24 v{t[1]}, 1821, v{t[0]}
        v_lshrrev_b32 v{t[1]}, 16, v{t[1]}
        v_mul_u32_u24 v{t[2]}, {1152-576}, v{t[1]}
        v_lshl_add_u32 v{t[2]}, v{t[0]}, 4, v{t[2]}
        v_add_u32 v{t[2]}, s64, v{t[2]}
        s_add_u32 m0, s65, {base + 8192*i}
        ''')
        if i == 4:
            a(f'''
            v_cmp_ge_u32 s[78:79], 64, v{t[1]}
            v_mov_b32 v{t[0]}, {OOB}
            s_nop 0
            v_cndmask_b32 v{t[2]}, v{t[0]}, v{t[2]}, s[78:79]
            ''')
        else:
            a('s_nop 0')
        a(dma(SRD_U, t[2], '0'))


UT_PRIV = 40960


def ut_setup(a, t):
    a(f'''
    v_lshrrev_b32 v{t[3]}, 5, v1
    v_bfe_u32 v{t[0]}, v1, 2, 2
    v_lshl_add_u32 v{t[0]}, v{t[3]}, 3, v{t[0]}
    v_mul_u32_u24 v{t[0]}, 576, v{t[0]}
    v_bfe_u32 v{t[2]}, v1, 4, 1
    v_lshl_add_u32 v{t[0]}, v{t[2]}, 5, v{t[0]}
    v_and_b32 v{t[2]}, 3, v1
    v_lshl_add_u32 v{t[0]}, v{t[2]}, 3, v{t[0]}
    s_lshl_b32 s64, s3, 6
    v_add_u32 v{t[0]}, s64, v{t[0]}
    v_and_b32 v{t[2]}, 7, v1
    v_xor_b32 v{t[3]}, v{t[3]}, v{t[2]}
    v_and_b32 v{t[1]}, 31, v1
    v_lshlrev_b32 v{t[1]}, 7, v{t[1]}
    v_lshl_add_u32 v{t[1]}, v{t[3]}, 4, v{t[1]}
    s_lshl_b32 s64, s3, 13
    s_add_u32 s64, s64, {UT_PRIV}
    v_add_u32 v{t[1]}, s64, v{t[1]}
    v_lshrrev_b32 v{t[3]}, 3, v1
    v_xor_b32 v{t[2]}, v{t[2]}, v{t[3]}
    v_lshlrev_b32 v{t[3]}, 13, v{t[3]}
    v_lshl_add_u32 v{t[3]}, v{t[2]}, 4, v{t[3]}
    v_lshl_add_u32 v{t[2]}, v1, 4, s64
    s_lshr_b32 s64, s62, 1
    s_lshl_b32 s64, s64, 7
    s_and_b32 s65, s62, 1
    s_mul_i32 s65, s65, 9
    s_add_u32 s65, s65, s3
    s_lshl_b32 s65, s65, 18
    s_add_u32 s65, s65, s64
    s_add_u32 s65, s65, {WS_UT}
    ''')


def ut_group(a, t, d):
    ws = f's[{SRD_WS}:{SRD_WS+3}]'
    for k in range(8):
        cp, th = k >> 2, k & 3
        o = (16*th + cp) * 576
        a(f'ds_read_b64_tr_b16 {v(d+4*k,2)}, v{t[0]} offset:{o}')
        a(f'ds_read_b64_tr_b16 {v(d+4*k+2,2)}, v{t[0]} offset:{o + 4*576}')
    for th in range(4):
        a(f'v_xor_b32 v{t[4]}, {32*th}, v{t[1]}')
        for cp in range(2):
            k = 4*cp + th
            if th == 0 and cp == 0:
                a('s_waitcnt lgkmcnt(0)')
            a(f'ds_write_b128 v{t[4]}, {v(d+4*k,4)} offset:{4096*cp}')
    for i in range(8):
        a(f'ds_read_b128 {v(d+4*i,4)}, v{t[2]} offset:{1024*i}')
    for i in range(8):
        a(f's_add_u32 s64, s65, {(i&3)*65536 + (i>>2)*4096}')
        a(f's_waitcnt lgkmcnt({7-i})')
        a(f'buffer_store_dwordx4 {v(d+4*i,4)}, v{t[3]}, {ws}, s64 offen{SC}')


class ConvRegs:
    def __init__(self):
        ra = RegAlloc(2, 250)
        self.t = [ra.get() for _ in range(6)]
        self.vA, self.vB = ra.get(), ra.get()
        self.z = ra.get(4, 4)
        self.A = [[ra.get(4, 4) for _ in range(8)] for _ in range(2)]
        self.B = [[ra.get(4, 4) for _ in range(8)] for _ in range(2)]
        self.acc = [ra.get(4, 4) for _ in range(8)]


def conv_addr(a, R):
    t = R.t
    a(f'''
    s_lshr_b32 s66, s3, 1
    s_add_u32 s64, s93, s66
    s_mul_i32 s66, s66, {CV_SLOT}
    s_add_u32 s66, s66, s92
    s_and_b32 s67, s3, 1
    v_lshlrev_b32 v{t[0]}, 4, v1
    v_and_b32 v{t[1]}, 15, v1
    v_lshrrev_b32 v{t[2]}, 4, v1
    v_and_b32 v{t[3]}, 1, v1
    v_lshrrev_b32 v{t[1]}, 1, v{t[1]}
    s_lshl_b32 s71, s67, 8
    s_sub_u32 s71, s66, s71
    v_mul_u32_u24 v{t[4]}, 4224, v{t[3]}
    v_lshl_add_u32 v{t[4]}, v{t[2]}, 4, v{t[4]}
    v_lshlrev_b32 v{t[5]}, 3, v{t[1]}
    v_sub_u32 v{t[4]}, v{t[4]}, v{t[5]}
    v_add_u32 v{t[4]}, {CV_K + CV_A + 2*2044 - 64*59}, v{t[4]}
    v_add_u32 v{R.vA}, s71, v{t[4]}
    v_mul_u32_u24 v{t[4]}, 4640, v{t[3]}
    v_lshl_add_u32 v{t[4]}, v{t[2]}, 4, v{t[4]}
    v_lshl_add_u32 v{t[4]}, v{t[1]}, 6, v{t[4]}
    v_add_u32 v{t[4]}, {512 - 192}, v{t[4]}
    v_add_u32 v{R.vB}, s71, v{t[4]}
    ''')


def conv_compute(a, R):
    t = R.t

    def reads(r):
        b = r & 1
        L = []
        for p in range(8):
            L.append(f'ds_read_b128 {v(R.B[b][7-p],4)}, v{R.vB} offset:{64*(8*(7-p)+3-r)}')
            o = 64*(59-8*p-r)
            L.append(f'ds_read_b64 {v(R.A[b][p],2)}, v{R.vA} offset:{o}')
            L.append(f'ds_read_b64 {v(R.A[b][p]+2,2)}, v{R.vA} offset:{o+8}')
        return L
    for x in reads(0):
        a(x)
    for r in range(4):
        b = r & 1
        mf = []
        for p in range(8):
            for c in range(7, p-1, -1):
                C = '0' if (r == 0 and p == 0) else v(R.acc[c], 4)
                mf.append(f'v_mfma_f32_16x16x32_bf16 {v(R.acc[c],4)}, {v(R.A[b][p],4)}, {v(R.B[b][c-p],4)}, {C}')
        a('s_waitcnt lgkmcnt(0)')
        nx = reads(r+1) if r < 3 else []
        for x in interleave(mf[:26], nx) + mf[26:]:
            a(x)
    a(f'''
    s_lshl_b32 s68, s3, 12
    s_xor_b32 s69, s68, 4096
    v_add_u32 v{t[0]}, {CV_XCH}, v{t[0]}
    v_add_u32 v{t[1]}, s69, v{t[0]}
    v_add_u32 v{t[0]}, s68, v{t[0]}
    v_and_b32 v{t[2]}, 15, v1
    v_lshrrev_b32 v{t[3]}, 4, v1
    v_lshlrev_b32 v{t[2]}, 5, v{t[2]}
    v_lshl_add_u32 v{t[2]}, v{t[3]}, 3, v{t[2]}
    s_lshl_b32 s68, s64, 12
    s_add_u32 s68, s68, {WS_YT}
    ''')


def conv_send(a, R, rh):
    for i in range(4):
        a(f'ds_write_b128 v{R.t[0]}, {v(R.acc[2*i+1-rh],4)} offset:{1024*i}')
    a('s_waitcnt lgkmcnt(0)')


def conv_finish(a, R, rh):
    ws = f's[{SRD_WS}:{SRD_WS+3}]'
    t = R.t
    for i in range(4):
        a(f'ds_read_b128 {v(R.A[0][i],4)}, v{t[1]} offset:{1024*i}')
    for i in range(4):
        c = 2*i + rh
        a(f's_waitcnt lgkmcnt({3-i})')
        for j in range(4):
            a(f'v_add_f32 v{R.acc[c]+j}, v{R.acc[c]+j}, v{R.A[0][i]+j}')
        a(f'v_cvt_pk_bf16_f32 v{R.B[0][i]}, v{R.acc[c]}, v{R.acc[c]+1}')
        a(f'v_cvt_pk_bf16_f32 v{R.B[0][i]+1}, v{R.acc[c]+2}, v{R.acc[c]+3}')
        a(f'buffer_store_dwordx2 {v(R.B[0][i],2)}, v{t[2]}, {ws}, s68 offen offset:{512*c}{SC}')


def yt_phase(a, t, d):
    out = f's[{SRD_OUT}:{SRD_OUT+3}]'
    a(f'''
    v_lshrrev_b32 v{t[0]}, 3, v1
    v_and_b32 v{t[1]}, 7, v1
    v_bfe_u32 v{t[2]}, v1, 4, 1
    v_lshlrev_b32 v{t[2]}, 2, v{t[2]}
    v_xor_b32 v{t[1]}, v{t[1]}, v{t[2]}
    v_lshlrev_b32 v{t[0]}, 12, v{t[0]}
    v_lshl_add_u32 v{t[0]}, v{t[1]}, 4, v{t[0]}
    s_and_b32 s70, s3, 3
    s_and_b32 s71, s{sIDX}, 7
    s_mul_i32 s71, s71, 9
    s_add_u32 s71, s71, s70
    s_lshl_b32 s72, s{sXCD}, 2
    s_lshr_b32 s73, s{sIDX}, 3
    s_add_u32 s72, s72, s73
    s_lshl_b32 s64, s71, 15
    s_lshl_b32 s65, s72, 7
    s_add_u32 s64, s64, s65
    s_add_u32 s64, s64, {WS_YT}
    s_mul_i32 s65, s70, 3072
    s_add_u32 s65, s65, {KV_HEAD}
    s_mov_b32 m0, s65
    s_nop 0
    ''')
    Ls = a.newlabel('ytskip')
    for i in range(3):
        if i == 2:
            a(f's_cmp_lg_u32 s70, 0\ns_cbranch_scc1 {Ls}')
        a(dma(SRD_WS, t[0], 's64'))
        if i < 2:
            a(f's_add_u32 m0, s65, {1024*(i+1)}\ns_add_u32 s64, s64, {4*32768}')
    a.label(Ls)
    a(f'''
    v_bfe_u32 v{t[1]}, v1, 2, 2
    v_lshrrev_b32 v{t[2]}, 4, v1
    v_bfe_u32 v{t[3]}, v1, 3, 1
    v_lshlrev_b32 v{t[3]}, 1, v{t[3]}
    v_xor_b32 v{t[3]}, v{t[3]}, v{t[2]}
    v_lshlrev_b32 v{t[1]}, 7, v{t[1]}
    v_lshl_add_u32 v{t[1]}, v{t[3]}, 5, v{t[1]}
    v_and_b32 v{t[3]}, 3, v1
    v_lshl_add_u32 v{t[1]}, v{t[3]}, 3, v{t[1]}
    v_add_u32 v{t[1]}, s65, v{t[1]}
    v_lshlrev_b32 v{t[3]}, 1, v{t[3]}
    v_bfe_u32 v{t[0]}, v1, 2, 2
    v_lshl_add_u32 v{t[3]}, v{t[0]}, 3, v{t[3]}
    v_bfe_u32 v{t[0]}, v1, 4, 1
    v_add_u32 v{t[3]}, v{t[3]}, v{t[0]}
    v_and_b32 v{t[0]}, 32, v1
    v_add_u32 v{t[3]}, v{t[3]}, v{t[0]}
    v_mul_u32_u24 v{t[3]}, 2304, v{t[3]}
    s_mul_i32 s64, s72, {64*2304}
    s_lshl_b32 s66, s71, 4
    s_add_u32 s64, s64, s66
    s_waitcnt vmcnt(0)
    ''')
    Le = a.newlabel('ytend')
    for i in range(3):
        if i == 2:
            a(f's_cmp_lg_u32 s70, 0\ns_cbranch_scc1 {Le}')
        r = d + 4*i
        a(f'ds_read_b64_tr_b16 {v(r,2)}, v{t[1]} offset:{1024*i}')
        a(f'ds_read_b64_tr_b16 {v(r+2,2)}, v{t[1]} offset:{1024*i + 512}')
        a('s_waitcnt lgkmcnt(0)')
        a(f'buffer_store_dwordx4 {v(r,4)}, v{t[3]}, {out}, s64 offen offset:{64*i}')
    a.label(Le)
```

```python
import sys
from asmlib import *
from layout import *
import phases
from phases import *
import ssm
from ssm import *

NAME = 'concat_heads__ssm_conv_s4__mha_block__prompt'
LDS = 163840
DBGCOPY = None
OPT = {}
SPIN_MAX = 1 << 16
FA, FB, FC = WS_FLAG, WS_FLAG + 32768, WS_FLAG + 65536
SLEEP = 2
sFA, sFB, sFC = 84, 85, 86
vSY = 242
vTAG = 250
ws = f's[{SRD_WS}:{SRD_WS+3}]'


def descriptor(name, vgpr=256):
    return f'''.amdhsa_kernel {name}
  .amdhsa_next_free_vgpr {vgpr}
  .amdhsa_next_free_sgpr 102
  .amdhsa_accum_offset {vgpr}
  .amdhsa_group_segment_fixed_size 0
  .amdhsa_kernarg_size 120
  .amdhsa_user_sgpr_count 2
  .amdhsa_user_sgpr_kernarg_segment_ptr 1
  .amdhsa_system_sgpr_workgroup_id_x 1
.end_amdhsa_kernel
'''


def flags_setup(a):
    a(f'''
    s_mul_i32 s{sFB}, s{sXCD}, 24
    s_add_u32 s{sFB}, s{sFB}, s{sIDX}
    s_lshl_b32 s87, s{sXCD}, 3
    s_add_u32 s87, s87, s{sIDX}
    s_add_u32 s87, s87, {192 - 24}
    s_cmp_lt_u32 s{sIDX}, 24
    s_cselect_b32 s{sFB}, s{sFB}, s87
    s_lshl_b32 s{sFB}, s{sFB}, 7
    s_add_u32 s{sFB}, s{sFB}, {FB}
    s_and_b32 s{sFC}, s{sIDX}, 7
    s_lshl_b32 s{sFC}, s{sFC}, 5
    s_lshl_b32 s87, s{sXCD}, 2
    s_add_u32 s{sFC}, s{sFC}, s87
    s_lshr_b32 s87, s{sIDX}, 3
    s_add_u32 s{sFC}, s{sFC}, s87
    s_lshl_b32 s{sFC}, s{sFC}, 7
    s_add_u32 s{sFC}, s{sFC}, {FC}
    ''')


def tag_load(a):
    L = a.newlabel('tld')
    a(f'''
    v_mov_b32 v{vSY}, 0
    s_lshl_b32 s87, s2, 3
    s_add_u32 s87, s87, s3
    s_cmp_lg_u32 s87, 7
    s_cbranch_scc1 {L}
    s_mov_b32 s87, {WS_NONCE}
    buffer_load_dwordx2 v[{vSY+2}:{vSY+3}], v{vSY}, {ws}, s87 offen sc1
    ''')
    a.label(L)


def tag_publish(a):
    L = a.newlabel('tpub')
    a(f'''
    s_lshl_b32 s87, s2, 3
    s_add_u32 s87, s87, s3
    s_cmp_lg_u32 s87, 7
    s_cbranch_scc1 {L}
    v_add_u32 v{vSY+2}, 1, v{vSY+2}
    v_max_u32 v{vSY+2}, 1, v{vSY+2}
    s_mov_b32 s87, {WS_NONCE}
    s_mov_b64 exec, 1
    global_store_dwordx2 v{vSY}, v[{vSY+2}:{vSY+3}], s[{sDBG}:{sDBG+1}] sc1
    buffer_store_dwordx2 v[{vSY+2}:{vSY+3}], v{vSY}, {ws}, s87 offen sc1
    s_mov_b64 exec, -1
    ''')
    a.label(L)


def tag_get(a):
    a(f'v_mov_b32 v{vSY+4}, 0')
    spin(a, f'global_load_dwordx2 v[{vTAG}:{vTAG+1}], v{vSY+4}, s[{sDBG}:{sDBG+1}] sc1', f'v_cmp_eq_u32 vcc, 0, v{vTAG}')


def flag_set(a, sF, wave):
    L = a.newlabel('fset')
    a(f'''
    s_cmp_lg_u32 s3, {wave}
    s_cbranch_scc1 {L}
    v_mov_b32 v{vSY}, 0
    s_mov_b64 exec, 1
    buffer_store_dwordx2 v[{vTAG}:{vTAG+1}], v{vSY}, {ws}, s{sF} offen sc1
    s_mov_b64 exec, -1
    ''')
    a.label(L)


def spin(a, load, test):
    L, Ld = a.newlabel('spin'), a.newlabel('spun')
    a('s_mov_b32 s87, 0')
    a.label(L)
    a(load)
    a('s_waitcnt vmcnt(0)')
    a(test)
    a(f'''
    s_add_u32 s87, s87, 1
    s_cbranch_vccz {Ld}
    s_sleep {SLEEP}
    s_cmp_lt_u32 s87, {SPIN_MAX}
    s_cbranch_scc1 {L}
    ''')
    a.label(Ld)


flag_ld = f'buffer_load_dwordx2 v[{vSY+2}:{vSY+3}], v{vSY+5}, {ws}, s88 offen sc1'
flag_test = f'v_cmp_ne_u64 vcc, v[{vTAG}:{vTAG+1}], v[{vSY+2}:{vSY+3}]'


def u_fetch(a, sSL):
    a(f'''
    v_and_b32 v{vSY+5}, 31, v1
    v_lshlrev_b32 v{vSY+5}, 8, v{vSY+5}
    s_add_u32 s88, s93, s{sSL}
    s_cmp_ge_u32 s88, 288
    s_cselect_b32 s88, 128, 0
    s_add_u32 s88, s88, {FA + 128*192}
    ''')
    spin(a, flag_ld, flag_test)
    u_issue(a, 196, sSL)


def p1_body(a, join, ST):
    Lssm, Lv, Lld, Lkg, Lfl = [a.newlabel(x) for x in ('ssm', 'v', 'ld', 'kg', 'flush')]
    R = KgenRegs()
    a(f's_cmp_ge_u32 s{sIDX}, 24\ns_cbranch_scc1 {Lssm}')
    gemm_setup(a)
    a(f'''
    s_lshl_b32 s{sFA}, s63, 4
    s_add_u32 s{sFA}, s{sFA}, s62
    s_lshl_b32 s{sFA}, s{sFA}, 7
    s_add_u32 s{sFA}, s{sFA}, {FA}
    s_mov_b32 s92, 110592
    s_mul_i32 s93, s{sXCD}, 24
    s_add_u32 s93, s93, s{sIDX}
    s_lshl_b32 s93, s93, 1
    s_mov_b32 s94, 4
    s_sub_u32 s91, s3, 6
    s_cmp_ge_u32 s3, 6
    s_cbranch_scc1 {Lkg}
    s_cmp_ge_u32 s3, 4
    s_cbranch_scc1 {Lld}
    ''')
    gemm_scalars(a)
    if OPT.get('cprio'): a(f"s_setprio {OPT['cprio']}")
    if OPT.get('nomfma'): a('s_barrier\n' * 9 + f's_branch {Lfl}')
    a(f's_cmp_ge_u32 s63, 8\ns_cbranch_scc1 {Lv}')
    gemm_compute(a, 'qk', ST); a(f's_branch {Lfl}')
    a.label(Lv)
    gemm_compute(a, 'v', ST); a(f's_branch {Lfl}')
    a.label(Lld)
    if OPT.get('lprio'): a(f"s_setprio {OPT['lprio']}")
    gemm_loader(a, ST)
    gemm_scalars(a)
    tag_get(a)
    a.label(Lfl)
    if OPT.get('cprio') or OPT.get('lprio'): a('s_setprio 0')
    a('s_barrier')
    stamp(a, 3, ST)
    gemm_flush(a)
    a(f's_branch {join}')
    a.label(Lssm)
    a(f'''
    s_lshl_b32 s62, s{sXCD}, 3
    s_add_u32 s62, s62, s{sIDX}
    s_sub_u32 s62, s62, 24
    s_lshl_b32 s{sFA}, s62, 7
    s_add_u32 s{sFA}, s{sFA}, {FA + 128*192}
    s_mov_b32 s92, 81920
    s_mul_i32 s93, s62, 3
    s_add_u32 s93, s93, 384
    s_mov_b32 s94, 6
    s_sub_u32 s91, s3, 5
    ''')
    ut_issue(a, R.ut, 0)
    a(f's_cmp_ge_u32 s3, 5\ns_cbranch_scc1 {Lkg}')
    ut_setup(a, R.ut)
    a('s_waitcnt vmcnt(0)\ns_barrier')
    stamp(a, 1, ST)
    Lu, Lu2, Lu3 = a.newlabel('utg'), a.newlabel('utd'), a.newlabel('ute')
    a('s_mov_b32 s80, 0')
    a.label(Lu)
    a(f's_add_u32 s81, s80, s3\ns_cmp_eq_u32 s81, 9\ns_cbranch_scc1 {Lu2}')
    ut_group(a, R.ut, R.ud)
    a.label(Lu2)
    a(f'''
    s_cmp_lg_u32 s80, 0
    s_cbranch_scc1 {Lu3}
    s_barrier
    s_mov_b32 s80, 5
    v_add_u32 v{R.ut[0]}, {64*5}, v{R.ut[0]}
    s_add_u32 s65, s65, {5 << 18}
    s_branch {Lu}
    ''')
    a.label(Lu3)
    tag_get(a)
    a('s_barrier')
    flag_set(a, sFA, 0)
    stamp(a, 2, ST)
    a('s_barrier\n' * 7)
    a(f's_branch {join}')
    a.label(Lkg)
    a(f'''
    s_mul_i32 s66, s91, {CV_SLOT}
    s_add_u32 s66, s66, s92
    s_add_u32 s66, s66, {CV_K}
    s_mov_b32 s95, s91
    s_add_u32 s91, s91, s93
    v_lshlrev_b32 v{R.vP}, 2, v1
    ''')
    tag_load(a)
    kgen_load(a, R, 91)
    kgen_setup(a, R)
    a('s_waitcnt vmcnt(0)')
    tag_publish(a)
    stamp(a, 1, ST)
    if OPT.get('kprio'): a(f"s_setprio {OPT['kprio']}")
    nb = len(ssm.BARS) + len(ssm.BARS2)
    if OPT.get('nokgen'): a('s_barrier\n' * nb)
    else: kgen_compute(a, R)
    if OPT.get('kprio'): a('s_setprio 0')
    stamp(a, 2, ST)
    a('s_barrier')
    tag_get(a)
    a('s_barrier\n' * (8 - nb))
    u_fetch(a, 95)
    a('s_barrier')


def build(ST=False):
    a = Asm()
    ref = open('cdna_kernels/%s.s.ref' % NAME).read().split('\n')
    head = [l for l in ref if l.startswith(';') and '@launch' not in l and 'Override launch' not in l and 'grid=ceil' not in l]
    a.lines += head
    a.lines.append(f'; @launch grid=(256,1,1) block=(512,1,1) lds={LDS}')
    K = NAME + '_kernel'
    a(f'.amdgcn_target "amdgcn-amd-amdhsa--gfx950"\n.text\n.globl {K}\n.p2align 8\n.type {K},@function')
    a.label(K)
    prologue(a, 'L_end')
    stamp(a, 0, ST)
    flags_setup(a)
    p1_body(a, 'L_join', ST)
    a.label('L_join')
    C = ConvRegs()
    conv_addr(a, C)
    attn_setup(a)
    a('s_waitcnt vmcnt(0) lgkmcnt(0)\ns_barrier')
    Lnf2 = a.newlabel('nofa')
    a(f's_cmp_ge_u32 s{sIDX}, 24\ns_cbranch_scc1 {Lnf2}')
    flag_set(a, sFA, 5)
    a.label(Lnf2)
    stamp(a, 4, ST)
    Lidle, L1, Lload, Lcend = [a.newlabel(x) for x in ('cidle', 'c1', 'cload', 'cend')]
    a(f's_cmp_ge_u32 s3, 6\ns_cbranch_scc1 {Lload}')
    a(f's_cmp_ge_u32 s3, s94\ns_cbranch_scc1 {Lidle}')
    conv_compute(a, C)
    stamp(a, 13, ST)
    a(f's_cmp_eq_u32 s67, 1\ns_cbranch_scc1 {L1}')
    conv_send(a, C, 0); a('s_barrier'); conv_finish(a, C, 0); a(f's_branch {Lcend}')
    a.label(L1)
    conv_send(a, C, 1); a('s_barrier'); conv_finish(a, C, 1); a(f's_branch {Lcend}')
    a.label(Lidle)
    a(f's_barrier\ns_branch {Lcend}')
    a.label(Lload)
    a(f'''
    v_and_b32 v{vSY+6}, 15, v1
    v_lshrrev_b32 v{vSY+7}, 4, v1
    v_min_u32 v{vSY+7}, 2, v{vSY+7}
    v_and_b32 v{vSY+5}, 1, v1
    s_lshl_b32 s64, s63, 1
    v_add_u32 v{vSY+5}, s64, v{vSY+5}
    v_cmp_eq_u32 s[64:65], 0, v{vSY+7}
    v_lshlrev_b32 v{vSY+7}, 6, v{vSY+7}
    s_lshr_b32 s66, s62, 3
    v_cndmask_b32 v{vSY+5}, v{vSY+6}, v{vSY+5}, s[64:65]
    v_add_u32 v{vSY+5}, v{vSY+5}, v{vSY+7}
    v_lshlrev_b32 v{vSY+5}, 7, v{vSY+5}
    s_lshl_b32 s88, s66, 11
    s_add_u32 s88, s88, {FA}
    v_lshlrev_b32 v2, 4, v1
    ''')
    spin(a, flag_ld, flag_test)
    stamp(a, 12, ST)
    kv_first(a, 2)
    a('s_barrier\ns_waitcnt vmcnt(0)')
    a.label(Lcend)
    a('s_barrier')
    stamp(a, 14, ST)
    Lhelp, Lz = a.newlabel('help'), a.newlabel('z')
    a(f's_cmp_ge_u32 s3, 4\ns_cbranch_scc1 {Lhelp}')
    R = AttnRegs()
    redo = attn_phase(a, R, ST)
    a(f's_cmp_ge_u32 s{sIDX}, 24\ns_cbranch_scc1 L_end')
    out_setup(a)
    a(f's_branch {Lz}')
    a.label(Lhelp)
    O = OutRegs()
    a('v_lshlrev_b32 v2, 4, v1')
    kv_rest(a, 2)
    a(f'''
    s_and_b32 s64, s{sIDX}, 7
    s_mul_i32 s64, s64, 72
    v_min_u32 v4, 35, v1
    v_lshl_add_u32 v4, v4, 1, s64
    v_subrev_u32 v5, 384, v4
    v_mul_u32_u24 v5, 171, v5
    v_lshrrev_b32 v5, 9, v5
    v_add_u32 v5, 192, v5
    s_movk_i32 s64, 384
    v_cmp_gt_u32 s[64:65], s64, v4
    v_lshrrev_b32 v4, 1, v4
    s_mov_b32 s88, {FB}
    v_cndmask_b32 v4, v5, v4, s[64:65]
    v_lshlrev_b32 v{vSY+5}, 7, v4
    v_mov_b32 v4, {VOTE}
    v_mov_b32 v5, 0
    ds_write_b32 v4, v5
    s_waitcnt vmcnt(0) lgkmcnt(0)
    s_barrier
    ''')
    flag_set(a, sFB, 4)
    a('s_sleep 32')
    spin(a, flag_ld, flag_test)
    yt_phase(a, [4, 5, 6, 7], 8)
    a('s_mov_b32 s90, s62')
    out_setup(a)
    out_wo_addr(a, O)
    Lnw, Lhr, Lhz = a.newlabel('nowo'), a.newlabel('hredo'), a.newlabel('hz')
    a(f's_barrier\ns_cmp_ge_u32 s{sIDX}, 24\ns_cbranch_scc1 {Lnw}')
    out_issue_wo(a, O)
    a.label(Lnw)
    a(f'''
    v_mov_b32 v{vSY}, {VOTE}
    s_barrier
    ds_read_b32 v{vSY+1}, v{vSY}
    s_waitcnt lgkmcnt(0)
    v_readfirstlane_b32 s64, v{vSY+1}
    s_cmp_lg_u32 s64, 0
    s_cbranch_scc1 {Lhr}
    ''')
    a.label(Lhz)
    flag_set(a, sFC, 4)
    a(f's_cmp_ge_u32 s{sIDX}, 24\ns_cbranch_scc1 L_end')
    a.label(Lz)
    stamp(a, 8, ST)
    a(f'''
    v_and_b32 v{vSY+5}, 31, v1
    v_lshlrev_b32 v{vSY+5}, 7, v{vSY+5}
    s_lshr_b32 s88, s62, 2
    s_lshl_b32 s88, s88, 12
    s_add_u32 s88, s88, {FC}
    ''')
    out_o_addr(a, O)
    Lp = a.newlabel('nopoll')
    a(f's_cmp_lg_u32 s3, 4\ns_cbranch_scc1 {Lp}')
    spin(a, flag_ld, flag_test)
    a.label(Lp)
    a('s_waitcnt vmcnt(0)\ns_barrier')
    out_issue_o(a, O)
    out_phase(a, O, ST)
    if DBGCOPY is not None:
        a(f'''
        s_add_u32 s64, s2, s3
        s_cmp_lg_u32 s64, 0
        s_cbranch_scc1 L_end
        s_waitcnt vmcnt(0)
        v_lshlrev_b32 v2, 3, v1
        v_lshlrev_b32 v3, 2, v1
        s_mov_b32 s64, {WS_STAMP + DBGCOPY*128}
        s_mov_b64 exec, 0xffff
        buffer_load_dword v4, v2, {ws}, s64 offen sc0 sc1
        s_waitcnt vmcnt(0)
        v_readfirstlane_b32 s64, v4
        s_nop 3
        v_subrev_u32 v4, s64, v4
        global_store_dword v3, v4, s[{sDBG}:{sDBG+1}]
        ''')
    a.label('L_end'); a('s_endpgm')
    redo()
    a.label(Lhr)
    a(f'''
    s_waitcnt vmcnt(0)
    s_mov_b32 s91, s62
    s_mov_b32 s62, s90
    v_lshlrev_b32 v{vSY}, 4, v1
    ''')
    kv_rest(a, vSY, 0)
    a(f'''
    s_mov_b32 s62, s91
    s_waitcnt vmcnt(0)
    s_barrier
    s_barrier
    s_cmp_ge_u32 s{sIDX}, 24
    s_cbranch_scc1 {Lhz}
    ''')
    out_issue_wo(a, O)
    a(f's_branch {Lhz}')
    a('.section .rodata,"a"')
    return a.text() + '.p2align 6\n' + descriptor(K)


if __name__ == '__main__':
    st = 2 if '--rt' in sys.argv else (1 if '--stamp' in sys.argv else 0)
    for x in sys.argv:
        if x.startswith('--copy='): DBGCOPY = int(x[7:])
        if x == '--pk': ssm.PK = True
        if x.startswith('--bars='): ssm.BARS, ssm.BARS2 = eval(x[7:])
        if x == '--ls': phases.LSTAMP = True
        if x.startswith('--rot='): phases.ROT = int(x[6:])
        if x.startswith('--o:'): OPT[x[4:].split('=')[0]] = int(x.split('=')[1])
    out = [x for x in sys.argv[1:] if not x.startswith('--')]
    path = out[0] if out else 'cdna_kernels/%s.s' % NAME
    open(path, 'w').write(build(st))
    print('wrote', path)
```

```python
import math
from asmlib import *
from layout import *

sWG, sWAVE = 2, 3
SRD_X, SRD_W, SRD_WS, SRD_OUT, SRD_U, SRD_WO = 8, 12, 16, 20, 24, 28
sPAR = 32
sDBG = 48
sWSP = 50
sXCD, sIDX = 60, 61
vTID, vLANE = 0, 1
OOB = 0x7ffffff0

LOG2E = 1.4426950408889634
SC = ' sc1'
ROT = 3
LSTAMP = False
LIGHT = False
OUTB = ''


def prologue(a, endlab, early=None):
    a(f'''
    s_cmp_ge_u32 s2, 256
    s_cbranch_scc1 {endlab}
    s_load_dwordx2 s[4:5], s[0:1], 0
    s_load_dwordx16 s[32:47], s[0:1], 8
    s_load_dwordx8 s[52:59], s[0:1], 72
    s_load_dwordx4 s[48:51], s[0:1], 104
    ''')
    if early: early()
    a(f'''
    v_lshrrev_b32 v2, 6, v0
    v_and_b32 v1, 63, v0
    s_and_b32 s{sXCD}, s2, 7
    v_readfirstlane_b32 s3, v2
    s_lshr_b32 s{sIDX}, s2, 3
    s_mov_b32 s{SRD_X+2}, {X_BYTES}
    s_mov_b32 s{SRD_X+3}, 0x00020000
    s_mov_b32 s{SRD_W+2}, {W_BYTES}
    s_mov_b32 s{SRD_W+3}, 0x00020000
    s_mov_b32 s{SRD_WS+2}, {WS_SIZE}
    s_mov_b32 s{SRD_WS+3}, 0x00020000
    s_mov_b32 s{SRD_OUT+2}, {OUT_BYTES}
    s_mov_b32 s{SRD_OUT+3}, 0x00020000
    s_mov_b32 s{SRD_U+2}, {X_BYTES}
    s_mov_b32 s{SRD_U+3}, 0x00020000
    s_mov_b32 s{SRD_WO+2}, {WO_BYTES}
    s_mov_b32 s{SRD_WO+3}, 0x00020000
    s_waitcnt lgkmcnt(0)
    s_mov_b32 s{SRD_U}, s4
    s_mov_b32 s{SRD_U+1}, s5
    s_mov_b32 s{SRD_X}, s52
    s_mov_b32 s{SRD_X+1}, s53
    s_mov_b32 s{SRD_W}, s54
    s_mov_b32 s{SRD_W+1}, s55
    s_mov_b32 s{SRD_WO}, s56
    s_mov_b32 s{SRD_WO+1}, s57
    s_mov_b32 s{SRD_OUT}, s58
    s_mov_b32 s{SRD_OUT+1}, s59
    s_mov_b32 s{SRD_WS}, s50
    s_mov_b32 s{SRD_WS+1}, s51
    ''')


def stamp(a, slot, on):
    if not on:
        return
    if LIGHT and slot not in (0, 11):
        return
    if LSTAMP:
        if slot < 100 and slot != 0: return
        slot = slot % 100
    elif slot >= 100:
        return
    if on == 3:
        a(f'''
        s_memrealtime s[96:97]
        v_mov_b32 v254, {slot*4}
        s_waitcnt lgkmcnt(0)
        s_and_b32 s96, s96, 0xffffff
        {'s_sub_u32 s96, 0x1000000, s96' if slot in (0, 4, 8) else ''}
        v_mov_b32 v252, s96
        s_mov_b64 s[96:97], exec
        s_mov_b64 exec, 1
        global_atomic_umax v254, v252, s[{sDBG}:{sDBG+1}]
        s_mov_b64 exec, s[96:97]
        ''')
        return
    a(f'''
    {'s_memrealtime' if on == 2 else 's_memtime'} s[96:97]
    s_lshl_b32 s98, s2, 3
    s_add_u32 s98, s98, s3
    s_lshl_b32 s98, s98, 7
    s_add_u32 s98, s98, {WS_STAMP + slot*8}
    v_mov_b32 v254, 0
    s_waitcnt lgkmcnt(0)
    v_mov_b32 v252, s96
    v_mov_b32 v253, s97
    s_mov_b64 s[96:97], exec
    s_mov_b64 exec, 1
    buffer_store_dwordx2 v[252:253], v254, s[{SRD_WS}:{SRD_WS+3}], s98 offen
    s_mov_b64 exec, s[96:97]
    ''')


def dma(srd, vaddr, soff, off=0):
    o = f' offset:{off}' if off else ''
    return f'buffer_load_dwordx4 v{vaddr}, s[{srd}:{srd+3}], {soff} offen{o}{SC if srd == SRD_WS else ""} lds'


def gemm_setup(a):
    a(f'''
    s_and_b32 s62, s{sXCD}, 3
    s_lshl_b32 s62, s62, 2
    s_and_b32 s64, s{sIDX}, 3
    s_add_u32 s62, s62, s64
    s_lshr_b32 s63, s{sXCD}, 2
    s_mul_i32 s63, s63, 6
    s_lshr_b32 s64, s{sIDX}, 2
    s_add_u32 s63, s63, s64
    ''')


XB, XS = 0, 16384
WB, WS_ = 49152, 20480
STG = 49152


def gemm_loader(a, ST, after_first_wait=None):
    ra = RegAlloc(2, 240)
    vX = [ra.get(), ra.get()]
    vW = [ra.get() for _ in range(5)]
    t0, t1, t2 = [ra.get() for _ in range(3)]
    sXo, sWo, sOff, sM, sMw = 64, 65, 66, 67, 68
    a(f'''
    v_lshrrev_b32 v{t0}, 3, v1
    v_and_b32 v{t1}, 7, v1
    v_lshrrev_b32 v{t2}, 1, v{t0}
    v_xor_b32 v{t1}, v{t1}, v{t2}
    v_mul_u32_u24 v{t0}, 1152, v{t0}
    v_lshl_add_u32 v{vX[0]}, v{t1}, 4, v{t0}
    v_xor_b32 v{t1}, 4, v{t1}
    v_lshl_add_u32 v{vX[1]}, v{t1}, 4, v{t0}
    v_add_u32 v{vX[1]}, {8*1152}, v{vX[1]}
    s_add_u32 s{sOff}, s62, s63
    s_mul_i32 s69, s{sOff}, 43
    s_lshr_b32 s69, s69, 7
    s_mul_i32 s69, s69, 3
    s_sub_u32 s{sOff}, s{sOff}, s69
    s_mul_i32 s{sOff}, s{sOff}, {ROT}
    s_and_b32 s70, s3, 1
    s_lshl_b32 s{sXo}, s62, 1
    s_add_u32 s{sXo}, s{sXo}, s70
    s_mul_i32 s{sXo}, s{sXo}, {64*1152}
    s_lshl_b32 s69, s{sOff}, 7
    s_add_u32 s{sXo}, s{sXo}, s69
    s_lshl_b32 s{sM}, s70, 13
    s_mul_i32 s{sMw}, s70, 10240
    s_add_u32 s{sMw}, s{sMw}, {WB}
    s_lshl_b32 s69, s{sOff}, 1
    s_add_u32 s69, s69, s70
    s_mul_i32 s69, s69, {32*3456}
    s_mul_i32 s{sWo}, s63, 288
    s_add_u32 s{sWo}, s{sWo}, s69
    ''')

    def xi(sl, i):
        a(f's_add_u32 m0, s{sM}, {XB + sl*XS + 1024*i}\ns_add_u32 s71, s{sXo}, {(i>>1)*16*1152}')
        a(dma(SRD_X, vX[i & 1], 's71'))

    def wi(sl, i):
        a(f's_add_u32 m0, s{sMw}, {sl*WS_ + 1024*i}\ns_add_u32 s71, s{sWo}, {(i//5)*16*3456}')
        a(dma(SRD_W, vW[i % 5], 's71'))
    for i in range(8):
        xi(0, i)
    for k in range(5):
        a(f'''
        v_add_u32 v{t0}, {64*k}, v1
        v_mul_u32_u24 v{t1}, 205, v{t0}
        v_lshrrev_b32 v{t1}, 12, v{t1}
        v_mul_u32_u24 v{t2}, 20, v{t1}
        v_sub_u32 v{t0}, v{t0}, v{t2}
        v_subrev_u32 v{t2}, 2, v{t0}
        v_max_u32 v{t2}, 16, v{t2}
        v_min_u32 v{t0}, v{t0}, v{t2}
        v_mul_u32_u24 v{t1}, 3456, v{t1}
        v_lshl_add_u32 v{vW[k]}, v{t0}, 4, v{t1}
        ''')
        wi(0, k); wi(0, k+5)

    def issue(st):
        sl = st % 3
        a(f's_add_u32 s{sXo}, s{sXo}, 128\ns_add_u32 s{sWo}, s{sWo}, {64*3456}')
        if st in (3, 6):
            a(f'''
            s_cmp_eq_u32 s{sOff}, {9-st}
            s_cselect_b32 s69, {9*128}, 0
            s_cselect_b32 s70, {9*64*3456}, 0
            s_sub_u32 s{sXo}, s{sXo}, s69
            s_sub_u32 s{sWo}, s{sWo}, s70
            ''')
        for i in range(10):
            if i < 8: xi(sl, i)
            wi(sl, i)
    issue(1)
    stamp(a, 110, ST)
    a('s_waitcnt vmcnt(18)\ns_barrier')
    stamp(a, 1, ST); stamp(a, 101, ST)
    if after_first_wait:
        after_first_wait()
    issue(2)
    for st in range(1, 9):
        a(f's_waitcnt vmcnt({18 if st < 8 else 0})')
        if st in (2, 4, 6, 8): stamp(a, 110 + st//2, ST)
        a('s_barrier')
        stamp(a, 101 + st, ST)
        if st + 2 <= 8:
            issue(st + 2)


def gemm_compute(a, role, ST, idle_work):
    ra = RegAlloc(2, 240)
    qk = role == 'qk'
    vXa = [[ra.get() for _ in range(4)] for _ in range(2)]
    vWa = [ra.get() for _ in range(3)]
    t0, t1, t2, t3 = [ra.get() for _ in range(4)]
    fX = [[ra.get(4, 4) for _ in range(2)] for _ in range(2)]
    fW = [[ra.get(4, 4) for _ in range(3)] for _ in range(2)]
    acc = [ra.get(16, 4) for _ in range(5)]
    va = [ra.get() for _ in range(4)]
    a(f'''
    s_lshr_b32 s69, s3, 1
    s_and_b32 s70, s3, 1
    v_and_b32 v{t0}, 31, v1
    v_lshrrev_b32 v{t1}, 5, v1
    v_bfe_u32 v{t2}, v1, 1, 3
    v_xor_b32 v{t2}, v{t2}, v{t1}
    s_lshl_b32 s71, s3, 12
    v_lshlrev_b32 v{t0}, 7, v{t0}
    v_lshl_add_u32 v{t0}, v{t2}, 4, v{t0}
    v_add_u32 v{vXa[0][0]}, s71, v{t0}
    v_xor_b32 v{vXa[0][1]}, 32, v{vXa[0][0]}
    v_xor_b32 v{vXa[0][2]}, 64, v{vXa[0][0]}
    v_xor_b32 v{vXa[0][3]}, 0x60, v{vXa[0][0]}
    v_xor_b32 v{vXa[1][0]}, 0x1000, v{vXa[0][0]}
    v_xor_b32 v{vXa[1][1]}, 0x1000, v{vXa[0][1]}
    v_xor_b32 v{vXa[1][2]}, 0x1000, v{vXa[0][2]}
    v_xor_b32 v{vXa[1][3]}, 0x1000, v{vXa[0][3]}
    v_bfe_u32 v{t0}, v1, 2, 2
    v_lshl_add_u32 v{t0}, v{t1}, 3, v{t0}
    v_mul_u32_u24 v{t0}, 320, v{t0}
    v_add_u32 v{t0}, {WB}, v{t0}
    v_and_b32 v{t2}, 3, v1
    v_bfe_u32 v{t3}, v1, 4, 1
    v_lshl_add_u32 v{t1}, v{t2}, 3, v{t0}
    v_lshl_add_u32 v{t0}, v{t3}, 5, v{t1}
    ''')
    a(f'''
    s_cmp_eq_u32 s70, 0
    s_cselect_b32 s71, 256, 0
    s_cselect_b32 s78, 0, 112
    s_cselect_b32 s79, 40, 184
    v_mul_u32_u24 v{vWa[0]}, s71, v{t3}
    v_add3_u32 v{vWa[0]}, v{vWa[0]}, v{t0}, s78
    v_add_u32 v{vWa[1]}, s79, v{t0}
    v_lshl_add_u32 v{t2}, v{t2}, 6, 32
    v_xor_b32 v{t3}, 1, v{t3}
    v_mul_u32_u24 v{t2}, v{t2}, v{t3}
    v_add_u32 v{vWa[2]}, v{t2}, v{t1}
    ''')
    wsel = [(0, 0), (1, 0), (2, 0)]
    ws = f's[{SRD_WS}:{SRD_WS+3}]'
    if qk:
        a(f'''
        v_lshlrev_b32 v{va[0]}, 4, v1
        s_lshl_b32 s71, s3, 10
        v_add_u32 v{va[0]}, s71, v{va[0]}
        v_xor_b32 v{va[2]}, 0x400, v{va[0]}
        v_lshrrev_b32 v{t1}, 5, v1
        v_and_b32 v{t2}, 31, v1
        v_lshlrev_b32 v{t1}, 10, v{t1}
        v_lshl_add_u32 v{t1}, v{t2}, 3, v{t1}
        s_lshl_b32 s71, s69, 8
        s_lshl_b32 s78, s70, 2
        s_add_u32 s71, s71, s78
        s_add_u32 s71, s71, {STG}
        v_add_u32 v{va[1]}, s71, v{t1}
        s_cmp_eq_u32 s70, 0
        s_cselect_b32 s64, 0, 3
        s_cselect_b32 s65, 7, 4
        s_cselect_b32 s66, 1, 5
        s_cselect_b32 s67, 2, 6
        s_mul_i32 s64, s64, s74
        s_mul_i32 s65, s65, s74
        s_mul_i32 s66, s66, s74
        s_mul_i32 s67, s67, s74
        s_add_u32 s64, s64, s73
        s_add_u32 s65, s65, s73
        s_add_u32 s66, s66, s73
        s_add_u32 s67, s67, s73
        ''')
    else:
        a(f'''
        s_cmp_eq_u32 s70, 0
        s_cselect_b32 s64, 0, 3
        s_cselect_b32 s65, 7, 1
        s_cselect_b32 s66, 1, 5
        s_mul_i32 s64, s64, s74
        s_mul_i32 s65, s65, s74
        s_mul_i32 s66, s66, s74
        s_mul_i32 s71, s3, 1216
        s_add_u32 s64, s64, s71
        s_add_u32 s66, s66, s71
        v_and_b32 v{t0}, 15, v1
        v_lshrrev_b32 v{t1}, 5, v1
        v_lshlrev_b32 v{t0}, 4, v{t0}
        v_lshl_add_u32 v{t0}, v{t1}, 8, v{t0}
        v_bfe_u32 v{t3}, v1, 4, 1
        v_mul_lo_u32 v{t2}, v{t3}, s65
        v_add3_u32 v{va[0]}, v{t2}, v{t0}, s64
        v_mul_lo_u32 v{t2}, v{t3}, s74
        v_add3_u32 v{va[1]}, v{t2}, v{t0}, s66
        s_mul_i32 s64, s70, -2432
        s_add_u32 s64, s64, 1216
        s_add_u32 s64, s64, s73
        v_and_b32 v{t0}, 31, v1
        v_mul_u32_u24 v{t1}, 48, v{t1}
        s_mul_i32 s71, s3, 192
        s_add_u32 s71, s71, {STG}
        v_add_u32 v{t1}, s71, v{t1}
        v_lshrrev_b32 v{t2}, 1, v{t0}
        v_mul_u32_u24 v{t2}, 768, v{t2}
        v_and_b32 v{t3}, 1, v1
        v_lshl_add_u32 v{t2}, v{t3}, 4, v{t2}
        v_add_u32 v{va[2]}, v{t2}, v{t1}
        ''')
        a(f'''
        v_subrev_u32 v{t2}, 16, v{t0}
        v_mul_u32_u24 v{t2}, 768, v{t2}
        v_add3_u32 v{t2}, v{t2}, v{t1}, 32
        v_cmp_le_u32 s[76:77], 16, v{t0}
        v_cmp_le_u32 s[78:79], 24, v{t0}
        v_mov_b32 v{t3}, 0x100000
        v_cndmask_b32 v{va[2]}, v{va[2]}, v{t2}, s[76:77]
        v_cndmask_b32 v{va[2]}, v{va[2]}, v{t3}, s[78:79]
        v_mov_b32 v{t3}, 0x3f803f80
        ''')

    q = []

    def reads(g):
        st, ks = divmod(g, 4)
        sl = st % 3; b = g & 1
        def X(z): return [(f'ds_read_b128 {v(fX[b][z],4)}, v{vXa[z][ks]} offset:{XB + sl*XS}', (g, 'x', z))]
        def W(f):
            r, o = wsel[f]
            return [(f'ds_read_b64_tr_b16 {v(fW[b][f]+2*u,2)}, v{vWa[r]} offset:{sl*WS_+(16*ks+4*u)*320+o}', (g, f, u)) for u in range(2)]
        return X(0) + W(0) + X(1) + W(1) + W(2)

    def issue(x):
        a(x[0]); q.append(x[1])

    def wait(tag):
        if tag in q:
            i = q.index(tag); n = len(q) - 1 - i
            del q[:i+1]
            a(f's_waitcnt lgkmcnt({n})')
    idle_work()
    a('s_barrier')
    stamp(a, 1, ST)
    for x in reads(0):
        issue(x)
    plan = [(0, 0, 0, (0, 1)), (1, 0, 1, ('x', 1)), (2, 1, 0, (1, 1)), (3, 1, 1, None), (4, 2, 0, (2, 1))]
    for g in range(36):
        b = g & 1
        if g % 4 == 3 and g < 35:
            wait((g, 2, 1))
            a('s_barrier')
        nx = reads(g+1) if g < 35 else []
        cut = [2, 4, 6, 8, 8]
        k = 0
        for n, (ai, f, z, tag) in enumerate(plan):
            if tag: wait((g,) + tag)
            A, B = (fW[b][f], fX[b][z]) if qk else (fX[b][z], fW[b][f])
            c = '0' if g == 0 else v(acc[ai], 16)
            a(f'v_mfma_f32_32x32x16_bf16 {v(acc[ai],16)}, {v(A,4)}, {v(B,4)}, {c}')
            while k < min(cut[n], len(nx)):
                issue(nx[k]); k += 1
    stamp(a, 2, ST)
    pk = [fW[0][0], fW[0][1]]
    a('s_nop 11')
    r = acc[4]
    if qk:
        for j in range(4):
            a(f'v_pk_mul_f32 {v(r+2*j,2)}, {v(r+2*j,2)}, s[76:77]')
        for e in range(4):
            a(f'v_cvt_pk_bf16_f32 v{r+8+e}, v{r+2*e}, v{r+2*e+1}')
        for e in range(4):
            a(f'ds_write_b32 v{va[1]}, v{r+8+e} offset:{((e>>1)*4 + (e&1))*512}')
    else:
        for m in range(2):
            d = fW[1][m]
            for j in range(4):
                a(f'v_cvt_pk_bf16_f32 v{d+j}, v{r+8*m+2*j}, v{r+8*m+2*j+1}')
            for j in range(4):
                a(f'v_cndmask_b32 v{d+j}, v{d+j}, v{t3}, s[76:77]')
            a(f'ds_write_b128 v{va[2]}, {v(d,4)} offset:{96*m}')
    for ai in range(4):
        f, z = ai >> 1, ai & 1
        for hb in range(2):
            r = acc[ai] + 8*hb
            d = pk[hb]
            if qk:
                for j in range(4):
                    a(f'v_pk_mul_f32 {v(r+2*j,2)}, {v(r+2*j,2)}, s[76:77]')
            for j in range(4):
                a(f'v_cvt_pk_bf16_f32 v{d+j}, v{r+2*j}, v{r+2*j+1}')
            if qk:
                a(f'buffer_store_dwordx4 {v(d,4)}, v{va[2*z]}, {ws}, s{64+2*f+hb} offen{SC}')
            else:
                a(f'buffer_store_dwordx4 {v(d,4)}, v{va[f]}, {ws}, s{64 if z else 73} offen offset:{512*hb}{SC}')
            if ai == 0 and hb == 0:
                a('s_waitcnt lgkmcnt(0)\ns_barrier')
    stamp(a, 3, ST)


def gemm_scalars(a):
    sc = hexf(DH ** -0.5 * LOG2E)
    a(f'''
    s_and_b32 s70, s63, 3
    s_lshl_b32 s70, s70, 3
    s_lshr_b32 s71, s62, 1
    s_mul_i32 s71, s71, {KV_CHUNK}
    s_add_u32 s71, s71, {WS_KV}
    s_and_b32 s72, s62, 1
    s_lshl_b32 s73, s72, 12
    s_add_u32 s73, s73, s71
    s_mul_i32 s79, s72, 4864
    s_add_u32 s79, s79, s71
    s_add_u32 s79, s79, 9216
    s_lshl_b32 s75, s72, 9
    s_add_u32 s75, s75, s71
    s_add_u32 s75, s75, 8192
    s_cmp_ge_u32 s63, 8
    s_cselect_b32 s73, s79, s73
    s_lshl_b32 s74, s62, 12
    s_add_u32 s74, s74, {WS_QM}
    s_lshl_b32 s76, s62, 9
    s_add_u32 s76, s76, {WS_QT}
    s_mov_b32 s78, {KV_HEAD}
    s_cmp_lt_u32 s63, 4
    s_cselect_b32 s73, s74, s73
    s_cselect_b32 s75, s76, s75
    s_cselect_b32 s74, 65536, s78
    s_cselect_b32 s72, 8192, s78
    s_cselect_b32 s76, {sc}, 1.0
    s_mov_b32 s77, s76
    s_mul_i32 s78, s70, s74
    s_add_u32 s73, s73, s78
    s_mul_i32 s78, s70, s72
    s_add_u32 s75, s75, s78
    s_mov_b32 s82, s73
    s_mov_b32 s83, s75
    s_mov_b32 s90, s72
    ''')


def gemm_flush(a):
    ws = f's[{SRD_WS}:{SRD_WS+3}]'
    t0, t1, t2, d = 200, 201, 202, 204
    Lv, Le = a.newlabel('flv'), a.newlabel('fle')
    a(f'''
    s_cmp_ge_u32 s63, 8
    s_cbranch_scc1 {Lv}
    s_and_b32 s69, s3, 1
    s_lshl_b32 s70, s69, 11
    s_add_u32 s70, s70, {STG}
    v_lshl_add_u32 v{t0}, v1, 4, s70
    ds_read_b128 {v(d,4)}, v{t0}
    ds_read_b128 {v(d+4,4)}, v{t0} offset:1024
    v_lshrrev_b32 v{t1}, 5, v1
    v_and_b32 v{t2}, 31, v1
    v_mul_lo_u32 v{t1}, v{t1}, s90
    v_lshl_add_u32 v{t1}, v{t2}, 4, v{t1}
    s_lshl_b32 s69, s69, 2
    s_mul_i32 s69, s69, s90
    s_add_u32 s69, s69, s83
    s_lshl_b32 s70, s90, 1
    s_add_u32 s70, s70, s69
    s_waitcnt lgkmcnt(1)
    buffer_store_dwordx4 {v(d,4)}, v{t1}, {ws}, s69 offen{SC}
    s_waitcnt lgkmcnt(0)
    buffer_store_dwordx4 {v(d+4,4)}, v{t1}, {ws}, s70 offen{SC}
    s_branch {Le}
    ''')
    a.label(Lv)
    a(f'''
    v_subrev_u32 v{t2}, 256, v0
    v_lshlrev_b32 v{t0}, 4, v{t2}
    v_add_u32 v{t1}, {STG}, v{t0}
    s_mov_b32 s69, {KV_HEAD - 4*1216}
    ''')
    for i in range(3):
        a(f'ds_read_b128 {v(d+4*i,4)}, v{t1} offset:{2048*i}')
    for i in range(3):
        a(f'''
        v_add_u32 v{t0}, {128*i}, v{t2}
        v_mul_u32_u24 v{t1}, 171, v{t0}
        v_lshlrev_b32 v{t0}, 4, v{t0}
        v_lshrrev_b32 v{t1}, 11, v{t1}
        v_lshl_add_u32 v{t0}, v{t1}, 10, v{t0}
        v_lshrrev_b32 v{t1}, 2, v{t1}
        v_mul_lo_u32 v{t1}, v{t1}, s69
        v_add_u32 v{t0}, v{t0}, v{t1}
        s_waitcnt lgkmcnt({2-i})
        buffer_store_dwordx4 {v(d+4*i,4)}, v{t0}, {ws}, s82 offen offset:1024{SC}
        ''')
    a.label(Le)


def attn_setup(a):
    a(f'''
    s_lshl_b32 s62, s{sXCD}, 2
    s_lshr_b32 s63, s{sIDX}, 3
    s_add_u32 s62, s62, s63
    s_and_b32 s63, s{sIDX}, 7
    ''')


QSTAGE = 153728
VOTE = 163836


class AttnRegs:
    def __init__(self):
        ra = RegAlloc(2, 250)
        self.vKa, self.vTa = ra.get(), ra.get()
        self.vVa = [ra.get(), ra.get()]
        self.t = [ra.get() for _ in range(7)]
        self.Qm = [ra.get(4, 4) for _ in range(2)]
        self.Qt = [[ra.get(2, 2) for _ in range(4)] for _ in range(2)]
        self.Km = [ra.get(4, 4), ra.get(4, 4)]
        self.V0 = [ra.get(4, 4), ra.get(4, 4)]
        self.V1 = [ra.get(4, 4), ra.get(4, 4)]
        self.Kt = [ra.get(2, 2), ra.get(2, 2)]
        self.T = ra.get(4, 2)
        self.P = ra.get(8, 4)
        self.S = [ra.get(16, 4), ra.get(16, 4)]
        self.O = [ra.get(16, 4), ra.get(16, 4)]
        self.NM = [ra.get(16, 4), ra.get(16, 4)]
        self.hi = ra.hi


def attn_phase(a, R, ST):
    t = R.t
    ws = f's[{SRD_WS}:{SRD_WS+3}]'
    sC, sFLAG, sMASK = 67, 68, 80
    a(f'''
    s_movk_i32 s{sMASK}, {(1 << 0) | (1 << 1) | (1 << 6)}
    v_lshlrev_b32 v{R.vKa}, 4, v1
    s_lshl_b32 s64, s3, 11
    s_add_u32 s64, s64, {QSTAGE}
    v_add_u32 v{t[1]}, s64, v{R.vKa}
    v_and_b32 v{t[0]}, 31, v1
    s_lshl_b32 s64, s3, 8
    s_add_u32 s64, s64, {QSTAGE + 8192}
    v_lshl_add_u32 v{t[2]}, v{t[0]}, 3, s64
    ds_read_b128 {v(R.Qm[0],4)}, v{t[1]}
    ds_read_b128 {v(R.Qm[1],4)}, v{t[1]} offset:1024
    ds_read_b64 {v(R.T,2)}, v{t[2]}
    v_lshlrev_b32 v{R.vTa}, 3, v1
    v_add_u32 v{R.vTa}, 8192, v{R.vTa}
    v_lshrrev_b32 v{t[1]}, 5, v1
    v_cmp_lt_u32 s[72:73], 18, v{t[0]}
    v_cmp_lt_u32 s[70:71], 15, v{t[0]}
    v_cmp_gt_u32 s[74:75], 32, v1
    v_lshlrev_b32 v{t[0]}, 4, v{t[0]}
    v_add_u32 v{t[0]}, 9216, v{t[0]}
    v_lshl_add_u32 v{t[2]}, v{t[1]}, 8, v{t[0]}
    v_mul_u32_u24 v{t[1]}, 48, v{t[1]}
    v_add_u32 v{t[1]}, v{t[1]}, v{t[0]}
    v_add_u32 v{t[1]}, {1024 - 256}, v{t[1]}
    v_cndmask_b32 v{R.vVa[0]}, v{t[2]}, v{t[1]}, s[70:71]
    v_add_u32 v{t[2]}, 512, v{t[2]}
    v_add_u32 v{t[1]}, 96, v{t[1]}
    v_cndmask_b32 v{R.vVa[1]}, v{t[2]}, v{t[1]}, s[70:71]
    v_mov_b32 v{t[2]}, 0x100000
    v_cndmask_b32 v{R.vVa[0]}, v{R.vVa[0]}, v{t[2]}, s[72:73]
    v_cndmask_b32 v{R.vVa[1]}, v{R.vVa[1]}, v{t[2]}, s[72:73]
    s_mov_b32 s{sFLAG}, 0
    ''')
    for z in range(2):
        for j in range(16):
            a(f'v_mov_b32 v{R.NM[z]+j}, 0')
    a('s_waitcnt lgkmcnt(0)')
    for z in range(2):
        q = R.T + z
        a(f'''
        v_cndmask_b32 v{R.Qt[z][0]}, 0, v{q}, s[74:75]
        v_mov_b32 v{R.Qt[z][0]+1}, 0
        v_mov_b32 v{R.Qt[z][1]}, 0
        v_cndmask_b32 v{R.Qt[z][1]+1}, 0, v{q}, s[74:75]
        v_cndmask_b32 v{R.Qt[z][2]}, v{q}, 0, s[74:75]
        v_mov_b32 v{R.Qt[z][2]+1}, 0
        v_mov_b32 v{R.Qt[z][3]}, 0
        v_cndmask_b32 v{R.Qt[z][3]+1}, v{q}, 0, s[74:75]
        ''')
    stamp(a, 5, ST)
    Lrun, Lloop, Lredo, Ldone = a.newlabel('arun'), a.newlabel('aloop'), a.newlabel('aredo'), a.newlabel('adone')
    Lout, Lout2 = a.newlabel('aout'), a.newlabel('aout2')
    a.label(Lrun)

    def ldK(tau): return f'ds_read_b128 {v(R.Km[tau&1],4)}, v{R.vKa} offset:{(tau>>3)*KV_CHUNK + (tau&7)*1024}'
    def ldT(g): return f'ds_read_b64 {v(R.Kt[g&1],2)}, v{R.vTa} offset:{(g>>1)*KV_CHUNK + (g&1)*512}'
    def ldV(tau, m): return f'ds_read_b128 {v((R.V1 if m else R.V0)[tau&1],4)}, v{R.vVa[m]} offset:{(tau>>3)*KV_CHUNK + (tau&7)*1216}'
    def mA(tau, z): return f'v_mfma_f32_32x32x16_bf16 {v(R.S[z],16)}, {v(R.Km[tau&1],4)}, {v(R.Qm[z],4)}, {v(R.NM[z],16)}'
    def mB(tau, z): return f'v_mfma_f32_32x32x8_bf16 {v(R.S[z],16)}, {v(R.Kt[(tau>>2)&1],2)}, {v(R.Qt[z][tau&3],2)}, {v(R.S[z],16)}'
    def mV(m, tau, z): return f'v_mfma_f32_32x32x16_bf16 {v(R.O[z],16)}, {v((R.V1 if m else R.V0)[tau&1],4)}, {v(R.P+4*m,4)}, {v(R.O[z],16)}'
    a(ldK(0)); a(ldT(0)); a(ldV(0, 0)); a(ldK(1)); a(ldV(0, 1)); a(ldV(1, 0))
    for z in range(2):
        for j in range(16):
            a(f'v_mov_b32 v{R.O[z]+j}, 0')
    for j in range(4):
        a(f'v_mov_b32 v{R.V1[1]+j}, 0\nv_mov_b32 v{R.P+4+j}, 0')
    a(f'v_mov_b32 v{R.T+2}, 0\nv_mov_b32 v{R.T+3}, 0\ns_mov_b32 s{sC}, 0')
    a('s_waitcnt lgkmcnt(3)')
    a(mA(0, 0)); a(mB(0, 0))
    a('s_nop 7\ns_nop 2')
    a('.p2align 6')
    a.label(Lloop)
    Lbar, Lback = a.newlabel('abar'), a.newlabel('aback')
    for sg in range(16):
        tau, z = sg >> 1, sg & 1
        tn, zn = (sg+1) >> 1, (sg+1) & 1
        tp = (sg-1) >> 1
        S = R.S[z]; Tt = R.T; P = R.P
        def e(i): a(f'v_exp_f32 v{Tt+(i&3)}, v{S+i}')
        def c(i): a(f'v_cvt_pk_bf16_f32 v{P+i}, v{Tt+((2*i)&3)}, v{Tt+((2*i)&3)+1}')
        def grp(g): e(4*g); c((2*g-1) % 8); e(4*g+1); e(4*g+2); c(2*g); e(4*g+3)
        a(mA(tn, zn))
        if z == 1: a(ldK(tau+2))
        if sg == 8: a(f's_bitcmp1_b32 s{sMASK}, s{sC}')
        if sg == 14: a(f's_add_u32 s{sC}, s{sC}, 1')
        grp(0)
        a(mB(tn, zn))
        if z == 1 and (tau & 3) == 1: a(ldT((tau >> 2) + 1))
        if sg == 8:
            a(f's_cbranch_scc1 {Lbar}')
            a.label(Lback)
        if sg == 14: a(f's_cmp_lt_u32 s{sC}, 8')
        grp(1)
        a(mV(1, tp, 1-z))
        if z == 1: a(ldV(tau+1, 1))
        grp(2)
        a(mV(0, tau, z))
        if z == 1: a(ldV(tau+2, 0))
        else: a('s_waitcnt lgkmcnt(0)')
        grp(3)
    a(f'''
    v_add_u32 v{R.vKa}, {KV_CHUNK}, v{R.vKa}
    v_add_u32 v{R.vTa}, {KV_CHUNK}, v{R.vTa}
    v_add_u32 v{R.vVa[0]}, {KV_CHUNK}, v{R.vVa[0]}
    v_add_u32 v{R.vVa[1]}, {KV_CHUNK}, v{R.vVa[1]}
    s_cbranch_scc1 {Lloop}
    v_cvt_pk_bf16_f32 v{R.P+7}, v{R.T+2}, v{R.T+3}
    s_waitcnt lgkmcnt(0)
    v_subrev_u32 v{R.vKa}, {8*KV_CHUNK}, v{R.vKa}
    ''')
    a(mV(1, 7, 1))
    a(f'''
    v_subrev_u32 v{R.vTa}, {8*KV_CHUNK}, v{R.vTa}
    v_subrev_u32 v{R.vVa[0]}, {8*KV_CHUNK}, v{R.vVa[0]}
    v_subrev_u32 v{R.vVa[1]}, {8*KV_CHUNK}, v{R.vVa[1]}
    s_mov_b32 s69, {hexf(2.0**-64)}
    s_mov_b32 s76, {hexf(2.0**64)}
    s_mov_b32 s77, {hexf(2.0**126)}
    s_mov_b64 s[78:79], 0
    ''')
    stamp(a, 6, ST)
    for z in range(2):
        O = R.O[z]; l = t[z]
        a(f'''
        v_mov_b32 v{l}, v{O+10}
        v_mov_b32 v{t[4]}, v{O+10}
        v_max3_f32 v{t[2]}, abs(v{O}), abs(v{O+1}), abs(v{O+2})
        v_max3_f32 v{t[3]}, abs(v{O+3}), abs(v{O+4}), abs(v{O+5})
        v_permlane32_swap_b32 v{l}, v{t[4]}
        v_max3_f32 v{t[2]}, v{t[2]}, abs(v{O+6}), abs(v{O+7})
        v_max3_f32 v{t[3]}, v{t[3]}, abs(v{O+8}), abs(v{O+9})
        v_max_f32 v{t[2]}, v{t[2]}, v{t[3]}
        v_cmp_nle_f32 s[70:71], s69, v{l}
        v_cmp_nge_f32 s[72:73], s76, v{l}
        v_cmp_nge_f32 vcc, s77, v{t[2]}
        s_or_b64 s[78:79], s[78:79], s[70:71]
        s_or_b64 s[78:79], s[78:79], s[72:73]
        s_or_b64 s[78:79], s[78:79], vcc
        ''')
    a(f'''
    s_cmp_eq_u64 s[78:79], 0
    s_cbranch_scc1 {Ldone}
    v_mov_b32 v{t[2]}, {VOTE}
    v_mov_b32 v{t[3]}, 1
    ds_write_b32 v{t[2]}, v{t[3]}
    ''')
    a.label(Ldone)
    a(f'''
    v_rcp_f32 v{t[0]}, v{t[0]}
    v_rcp_f32 v{t[1]}, v{t[1]}
    s_lshl_b32 s64, s63, 2
    s_add_u32 s64, s64, s3
    s_mul_i32 s65, s64, {4*18432}
    s_lshl_b32 s66, s62, 9
    s_add_u32 s65, s65, s66
    s_add_u32 s65, s65, {WS_O}
    s_lshl_b32 s64, s64, 13
    s_lshl_b32 s66, s62, 8
    s_add_u32 s64, s64, s66
    s_add_u32 s64, s64, {WS_OT}
    s_add_u32 s66, s65, {2*18432}
    v_bfe_u32 v{t[4]}, v1, 4, 1
    v_and_b32 v{t[2]}, 15, v1
    v_mul_u32_u24 v{t[4]}, 18432, v{t[4]}
    v_lshl_add_u32 v{t[4]}, v{t[2]}, 4, v{t[4]}
    v_lshrrev_b32 v{t[2]}, 5, v1
    v_lshl_add_u32 v{t[2]}, v{t[2]}, 8, v{t[4]}
    v_lshlrev_b32 v{t[3]}, 2, v1
    ''')
    for z in range(2):
        O = R.O[z]; d = R.S[z]
        for j in range(10):
            a(f'v_mul_f32 v{O+j}, v{t[z]}, v{O+j}')
        for j in (4, 0, 1, 2, 3):
            a(f'v_cvt_pk_bf16_f32 v{d+j}, v{O+2*j}, v{O+2*j+1}')
        a(f'buffer_store_dwordx4 {v(d,4)}, v{t[2]}, {ws}, s{65+z} offen{SC}')
    a(f'''
    v_permlane32_swap_b32 v{R.S[0]+4}, v{R.S[1]+4}
    buffer_store_dword v{R.S[0]+4}, v{t[3]}, {ws}, s64 offen{SC}
    ''')
    stamp(a, 7, ST)
    a(f'''
    v_mov_b32 v{t[2]}, {VOTE}
    s_waitcnt vmcnt(0) lgkmcnt(0)
    s_barrier
    s_cmp_lg_u32 s{sFLAG}, 0
    s_cbranch_scc1 {Lout2}
    ds_read_b32 v{t[3]}, v{t[2]}
    s_waitcnt lgkmcnt(0)
    v_readfirstlane_b32 s69, v{t[3]}
    s_cmp_lg_u32 s69, 0
    s_cbranch_scc1 {Lredo}
    ''')
    a.label(Lout)

    def redo():
        a.label(Lbar)
        a(f's_waitcnt vmcnt(0)\ns_barrier\ns_branch {Lback}')
        a.label(Lout2)
        a(f's_barrier\ns_branch {Lout}')
        Lm = a.newlabel('amax')
        a.label(Lredo)
        a(f'''
        s_barrier
        v_mov_b32 v{t[0]}, 0xff800000
        v_mov_b32 v{t[1]}, 0xff800000
        s_mov_b32 s{sC}, 0
        ''')
        a.label(Lm)
        for tau in range(8):
            a(ldK(tau))
            if (tau & 3) == 0:
                a(ldT(tau >> 2))
            a('s_waitcnt lgkmcnt(0)')
            for z in range(2):
                S = R.S[z]
                a(f'v_mfma_f32_32x32x16_bf16 {v(S,16)}, {v(R.Km[tau&1],4)}, {v(R.Qm[z],4)}, 0')
                a(f'v_mfma_f32_32x32x8_bf16 {v(S,16)}, {v(R.Kt[tau>>2],2)}, {v(R.Qt[z][tau&3],2)}, {v(S,16)}')
            a('s_nop 11')
            for z in range(2):
                S = R.S[z]
                for j in range(8):
                    a(f'v_max3_f32 v{t[z]}, v{t[z]}, v{S+2*j}, v{S+2*j+1}')
        a(f'''
        v_add_u32 v{R.vKa}, {KV_CHUNK}, v{R.vKa}
        v_add_u32 v{R.vTa}, {KV_CHUNK}, v{R.vTa}
        s_add_u32 s{sC}, s{sC}, 1
        s_cmp_lt_u32 s{sC}, 8
        s_cbranch_scc1 {Lm}
        v_mov_b32 v{t[2]}, v{t[0]}
        v_mov_b32 v{t[3]}, v{t[1]}
        v_subrev_u32 v{R.vKa}, {8*KV_CHUNK}, v{R.vKa}
        v_subrev_u32 v{R.vTa}, {8*KV_CHUNK}, v{R.vTa}
        v_permlane32_swap_b32 v{t[0]}, v{t[2]}
        v_permlane32_swap_b32 v{t[1]}, v{t[3]}
        s_mov_b32 s{sFLAG}, 16
        s_mov_b32 s{sMASK}, 0
        v_max_f32 v{t[0]}, v{t[0]}, v{t[2]}
        v_max_f32 v{t[1]}, v{t[1]}, v{t[3]}
        ''')
        for z in range(2):
            for j in range(16):
                a(f'v_sub_f32 v{R.NM[z]+j}, 0, v{t[z]}')
        a(f's_branch {Lrun}')
    return redo


def kv_first(a, vL):
    a(f'''
    s_and_b32 s64, s3, 1
    s_lshl_b32 s65, s62, 16
    s_lshl_b32 s66, s63, 13
    s_add_u32 s65, s65, s66
    s_lshl_b32 s66, s64, 12
    s_add_u32 s65, s65, s66
    s_add_u32 m0, s66, {QSTAGE}
    s_add_u32 s65, s65, {WS_QM}
    s_mul_i32 s67, s62, {KV_HEAD}
    s_add_u32 s67, s67, s66
    s_add_u32 s67, s67, {WS_KV}
    ''')
    for i in range(4):
        a(dma(SRD_WS, vL, 's65', 1024*i))
    a(f'''
    s_lshl_b32 s65, s62, 13
    s_lshl_b32 s68, s63, 10
    s_add_u32 s65, s65, s68
    s_mov_b32 m0, {QSTAGE + 8192}
    s_add_u32 s65, s65, {WS_QT}
    ''')
    a(dma(SRD_WS, vL, 's65'))
    for k in range(3):
        a(f's_add_u32 m0, s66, {8192*k}')
        a(f's_add_u32 s67, s67, 8192' if k else 's_nop 0')
        for i in range(4):
            a(dma(SRD_WS, vL, 's67', 1024*i))


def kv_rest(a, vL, first=24):
    a(f'''
    s_and_b32 s66, s3, 3
    s_lshl_b32 s66, s66, 12
    s_add_u32 s66, s66, {first*1024}
    s_mul_i32 s67, s62, {KV_HEAD}
    s_add_u32 s67, s67, s66
    s_add_u32 s67, s67, {WS_KV}
    ''')
    L = a.newlabel('kvlast')
    ng = (148 - first) // 4
    for k in range((ng + 3) // 4):
        if 4*k + 4 > ng:
            a(f's_cmp_ge_u32 s3, {4 + ng - 4*k}\ns_cbranch_scc1 {L}')
        a(f's_add_u32 m0, s66, {16384*k}')
        a(f's_add_u32 s67, s67, 16384' if k else 's_nop 0')
        for i in range(4):
            a(dma(SRD_WS, vL, 's67', 1024*i))
    a.label(L)


XCH = 110592
OSTG = XCH + 24576
NPRE = 6


class OutRegs:
    def __init__(self):
        ra = RegAlloc(2, 250)
        self.t = [ra.get() for _ in range(6)]
        self.vM = [ra.get() for _ in range(3)]
        self.vT = [ra.get() for _ in range(3)]
        self.vAe, self.vAo = ra.get(), ra.get()
        self.vS = [ra.get(), ra.get()]
        self.Of = [ra.get(4, 4) for _ in range(9)]
        self.fA = [[ra.get(4, 4) for _ in range(6)] for _ in range(NPRE)]
        self.acc = [ra.get(4, 4) for _ in range(6)]


def out_setup(a):
    a(f'''
    s_lshl_b32 s62, s{sXCD}, 2
    s_and_b32 s63, s{sIDX}, 3
    s_add_u32 s62, s62, s63
    s_lshr_b32 s63, s{sIDX}, 2
    ''')


def out_wo_addr(a, R):
    t = R.t
    for i in range(3):
        a(f'''
        v_add_u32 v{t[0]}, {64*i}, v1
        v_mul_u32_u24 v{t[1]}, 171, v{t[0]}
        v_lshrrev_b32 v{t[1]}, 11, v{t[1]}
        v_mul_u32_u24 v{t[2]}, 12, v{t[1]}
        v_sub_u32 v{t[0]}, v{t[0]}, v{t[2]}
        v_lshrrev_b32 v{t[2]}, 3, v{t[1]}
        v_lshlrev_b32 v{t[3]}, 1, v{t[2]}
        v_xor_b32 v{t[0]}, v{t[0]}, v{t[3]}
        v_lshlrev_b32 v{t[0]}, 4, v{t[0]}
        v_and_b32 v{t[3]}, 3, v{t[1]}
        v_bfe_u32 v{t[4]}, v{t[1]}, 2, 1
        v_lshl_add_u32 v{t[3]}, v{t[4]}, 3, v{t[3]}
        v_lshl_add_u32 v{t[3]}, v{t[2]}, 2, v{t[3]}
        v_mul_u32_u24 v{t[3]}, 1152, v{t[3]}
        v_add_u32 v{R.vM[i]}, v{t[3]}, v{t[0]}
        v_lshrrev_b32 v{t[3]}, 1, v{t[1]}
        v_mul_u32_u24 v{t[3]}, 18, v{t[3]}
        v_and_b32 v{t[4]}, 1, v{t[1]}
        v_add3_u32 v{t[3]}, v{t[3]}, v{t[4]}, 16
        v_bfe_u32 v{t[4]}, v{t[1]}, 1, 1
        v_lshlrev_b32 v{t[4]}, 4, v{t[4]}
        v_sub_u32 v{t[3]}, v{t[3]}, v{t[4]}
        v_mul_u32_u24 v{t[3]}, 1152, v{t[3]}
        v_add_u32 v{R.vT[i]}, v{t[3]}, v{t[0]}
        ''')


def out_issue_wo(a, R):
    a(f'''
    s_and_b32 s67, s3, 3
    s_mul_i32 s64, s63, 192
    s_mul_i32 s65, s67, {18*1152}
    s_add_u32 s65, s65, s64
    s_and_b32 s66, s67, 1
    s_mul_i32 s66, s66, {2*1152}
    s_add_u32 s65, s65, s66
    s_mul_i32 s66, s67, 3072
    ''')
    for k in range(8):
        for i in range(3):
            a(f's_add_u32 m0, s66, {k*4*3072 + i*1024}')
            a('s_nop 0' if (i or not k) else f's_add_u32 s65, s65, {4*18*1152}')
            a(dma(SRD_WO, R.vM[i], 's65'))
    a(f'''
    s_mul_i32 s65, s67, {8*18*1152}
    s_add_u32 s65, s65, s64
    ''')
    for i in range(3):
        a(f's_add_u32 m0, s66, {32*3072 + i*1024}\ns_nop 0')
        a(dma(SRD_WO, R.vT[i], 's65'))


def out_o_addr(a, R):
    t = R.t
    a(f'''
    s_lshl_b32 s64, s62, 2
    s_and_b32 s65, s3, 3
    s_add_u32 s64, s64, s65
    s_mul_i32 s64, s64, 18432
    s_lshl_b32 s68, s62, 13
    s_lshl_b32 s65, s65, 6
    s_add_u32 s68, s68, s65
    s_add_u32 s68, s68, {WS_OT}
    s_add_u32 s69, s68, 4096
    s_lshr_b32 s65, s3, 2
    s_mul_i32 s65, s65, 9216
    s_add_u32 s64, s64, s65
    s_add_u32 s64, s64, {WS_O}
    s_add_u32 s65, s64, 4096
    s_add_u32 s66, s64, 8192
    v_lshlrev_b32 v{t[5]}, 4, v1
    v_lshrrev_b32 v{t[4]}, 4, v1
    v_and_b32 v{t[3]}, 15, v1
    v_lshlrev_b32 v{t[4]}, 10, v{t[4]}
    v_lshl_add_u32 v{t[4]}, v{t[3]}, 2, v{t[4]}
    ''')


def out_issue_o(a, R):
    t = R.t
    ws = f's[{SRD_WS}:{SRD_WS+3}]'
    L1, Lj = a.newlabel('otail'), a.newlabel('oj')
    for k in range(7):
        a(f'buffer_load_dwordx4 {v(R.Of[k],4)}, v{t[5]}, {ws}, s{64 + k//4} offen offset:{(k%4)*1024}{SC}')
    a(f's_cmp_gt_u32 s3, 3\ns_cbranch_scc1 {L1}')
    for k in (7, 8):
        a(f'buffer_load_dwordx4 {v(R.Of[k],4)}, v{t[5]}, {ws}, s{64 + k//4} offen offset:{(k%4)*1024}{SC}')
    a(f's_branch {Lj}')
    a.label(L1)
    for k in (7, 8):
        for e in range(4):
            a(f'buffer_load_dword v{R.Of[k]+e}, v{t[4]}, {ws}, s{61+k} offen offset:{256*e}{SC}')
    a.label(Lj)


def out_reads(R, k):
    L = []
    for f in range(6):
        for u in range(2):
            L.append(f'ds_read_b64_tr_b16 {v(R.fA[k % NPRE][f]+2*u,2)}, v{R.vAo if f&1 else R.vAe} offset:{k*6144+u*768+f*32}')
    return L


def out_preload(a, R):
    t = R.t
    a(f'''
    v_lshrrev_b32 v{t[0]}, 4, v1
    v_bfe_u32 v{t[1]}, v1, 2, 2
    v_lshl_add_u32 v{t[1]}, v{t[0]}, 3, v{t[1]}
    v_mul_u32_u24 v{t[1]}, 192, v{t[1]}
    v_and_b32 v{t[2]}, 3, v1
    v_lshl_add_u32 v{t[1]}, v{t[2]}, 3, v{t[1]}
    s_lshr_b32 s67, s3, 2
    s_mul_i32 s67, s67, 55296
    v_add_u32 v{t[1]}, s67, v{t[1]}
    v_and_b32 v{t[2]}, 1, v{t[0]}
    v_lshlrev_b32 v{t[2]}, 5, v{t[2]}
    v_add_u32 v{R.vAe}, v{t[1]}, v{t[2]}
    v_sub_u32 v{R.vAo}, v{t[1]}, v{t[2]}
    ''')
    for k in range(NPRE):
        for x in out_reads(R, k):
            a(x)
    vM, vT = R.vM, R.vT
    a(f'''
    s_mul_i32 s70, s3, 3072
    s_xor_b32 s71, s3, 4
    s_mul_i32 s71, s71, 3072
    v_lshlrev_b32 v{t[1]}, 4, v1
    v_add_u32 v{t[1]}, {XCH}, v{t[1]}
    v_add_u32 v{vM[0]}, s70, v{t[1]}
    v_add_u32 v{vM[1]}, s71, v{t[1]}
    s_mul_i32 s70, s3, 2048
    s_add_u32 s70, s70, {OSTG}
    v_and_b32 v{t[2]}, 15, v1
    v_mul_u32_u24 v{t[2]}, 112, v{t[2]}
    v_lshl_add_u32 v{t[2]}, v{t[0]}, 3, v{t[2]}
    v_add_u32 v{vM[2]}, s70, v{t[2]}
    s_lshl_b32 s72, s62, 2
    s_and_b32 s71, s3, 3
    s_add_u32 s72, s72, s71
    s_mul_i32 s72, s72, {16*2304}
    s_mul_i32 s71, s63, 192
    s_add_u32 s72, s72, s71
    s_lshr_b32 s71, s3, 2
    s_mul_i32 s71, s71, 96
    s_add_u32 s72, s72, s71
    s_add_u32 s72, s72, 1152
    ''')
    for i in range(2):
        a(f'''
        v_add_u32 v{t[0]}, {64*i}, v1
        v_mul_u32_u24 v{t[1]}, 171, v{t[0]}
        v_lshrrev_b32 v{t[1]}, 10, v{t[1]}
        v_lshlrev_b32 v{t[0]}, 4, v{t[0]}
        v_lshl_add_u32 v{t[2]}, v{t[1]}, 4, v{t[0]}
        v_add_u32 v{vT[i]}, s70, v{t[2]}
        v_mul_u32_u24 v{t[1]}, {2304 - 96}, v{t[1]}
        v_add_u32 v{R.vS[i]}, v{t[1]}, v{t[0]}
        ''')
    a(f'''
    v_cmp_gt_u32 s[74:75], 32, v1
    v_mov_b32 v{t[0]}, {OOB}
    s_nop 0
    v_cndmask_b32 v{R.vS[1]}, v{t[0]}, v{R.vS[1]}, s[74:75]
    ''')


def out_phase(a, R, ST):
    t = R.t
    vM, vT = R.vM, R.vT
    stamp(a, 9, ST)
    for k in range(9):
        mf = [f'v_mfma_f32_16x16x32_bf16 {v(R.acc[f],4)}, {v(R.fA[k % NPRE][f],4)}, {v(R.Of[k],4)}, {v(R.acc[f],4) if k else 0}' for f in range(6)]
        w = f's_waitcnt vmcnt({8-k if k < 7 else 0})'
        if k == 0 or k == NPRE: w += ' lgkmcnt(0)'
        a(w)
        nx = out_reads(R, k + NPRE) if k + NPRE < 9 else []
        for f in range(6):
            a(mf[f])
            for x in nx[2*f:2*f+2]:
                a(x)
    stamp(a, 10, ST)
    out = f's[{SRD_OUT}:{SRD_OUT+3}]'
    L1, Lj = a.newlabel('kh1'), a.newlabel('khj')
    a(f's_cmp_gt_u32 s3, 3\ns_cbranch_scc1 {L1}')
    for kh in range(2):
        if kh == 1:
            a.label(L1)
        keep = [3*kh + i for i in range(3)]
        send = [3*(1-kh) + i for i in range(3)]
        a('s_nop 5' if kh == 0 else 's_nop 2')
        for i, f in enumerate(send):
            a(f'ds_write_b128 v{vM[0]}, {v(R.acc[f],4)} offset:{i*1024}')
        a('s_waitcnt lgkmcnt(0)\ns_barrier')
        for i in range(3):
            a(f'ds_read_b128 {v(R.fA[0][i],4)}, v{vM[1]} offset:{i*1024}')
        for i, f in enumerate(keep):
            a(f's_waitcnt lgkmcnt({2})' if i == 0 else f's_waitcnt lgkmcnt({2})')
            for j in range(4):
                a(f'v_add_f32 v{R.acc[f]+j}, v{R.acc[f]+j}, v{R.fA[0][i]+j}')
            a(f'v_cvt_pk_bf16_f32 v{R.fA[1][i]}, v{R.acc[f]}, v{R.acc[f]+1}')
            a(f'v_cvt_pk_bf16_f32 v{R.fA[1][i]+1}, v{R.acc[f]+2}, v{R.acc[f]+3}')
            a(f'ds_write_b64 v{vM[2]}, {v(R.fA[1][i],2)} offset:{32*i}')
        if kh == 0:
            a(f's_branch {Lj}')
    a.label(Lj)
    a(f'''
    ds_read_b128 {v(R.fA[2][0],4)}, v{vT[0]}
    ds_read_b128 {v(R.fA[2][1],4)}, v{vT[1]}
    s_waitcnt lgkmcnt(1)
    buffer_store_dwordx4 {v(R.fA[2][0],4)}, v{R.vS[0]}, {out}, s72 offen{OUTB}
    s_waitcnt lgkmcnt(0)
    buffer_store_dwordx4 {v(R.fA[2][1],4)}, v{R.vS[1]}, {out}, s72 offen{OUTB}
    ''')
    stamp(a, 11, ST)
```

```python
import math
from asmlib import *
from layout import *
from phases import *

PK = False
HOOK_R = 1
OUTA = ''
KROW = 272
KG_LDS = 59 * KROW
CV_K = 9280
CV_SLOT = CV_K + KG_LDS
CV_A = 16
CV_XCH = 49152
EXPS = list(range(8)) + [256, 258, 260, 262, 264] + [512, 516, 520, 768, 772, 776] + \
       [1024, 1032, 1280, 1288, 1536, 1544, 1792, 1800]
assert len(EXPS) == 27
WANT = [list(range(8)) + [1024, 1024, 1032, 1280, 1280, 1288, 1536, 1544],
        [256, 256, 258, 260, 260, 260, 262, 264] + [512, 516, 520, 768, 772, 776, 1792, 1800]]


def rowmap():
    m = [0]*32
    for h in range(2):
        for r in range(16):
            m[(r & 3) + 8*(r >> 2) + 4*h] = EXPS.index(WANT[h][r])
    return m


def cmul(d, x, y, pk=False):
    if PK or pk:
        return [f'v_pk_mul_f32 {v(d,2)}, {v(x,2)}, {v(y,2)} op_sel:[0,0] op_sel_hi:[1,0]',
                f'v_pk_fma_f32 {v(d,2)}, {v(x,2)}, {v(y,2)}, {v(d,2)} op_sel:[1,1,0] op_sel_hi:[0,1,1] neg_lo:[1,0,0]']
    return [f'v_mul_f32 v{d}, v{x}, v{y}\nv_mul_f32 v{d+1}, v{x+1}, v{y}',
            f'v_fma_f32 v{d}, -v{x+1}, v{y+1}, v{d}\nv_fmac_f32 v{d+1}, v{x}, v{y+1}']


def kgen_setup(a, R):
    t = R.t
    rm = rowmap()
    for i in range(8):
        w = sum(rm[4*i+j] << (8*j) for j in range(4))
        a(f's_mov_b32 s{70+i}, 0x{w:08x}')
    a(f'''
    v_bfe_u32 v{t[0]}, v1, 2, 3
    v_mov_b32 v{t[1]}, s70
    ''')
    for i in range(1, 8):
        a(f'''
        v_cmp_eq_u32 s[78:79], {i}, v{t[0]}
        v_mov_b32 v{t[2]}, s{70+i}
        s_nop 0
        v_cndmask_b32 v{t[1]}, v{t[1]}, v{t[2]}, s[78:79]
        ''')
    a(f'''
    v_and_b32 v{t[0]}, 3, v1
    v_lshlrev_b32 v{t[0]}, 3, v{t[0]}
    v_bfe_u32 v{t[1]}, v{t[1]}, v{t[0]}, 8
    v_mul_u32_u24 v{t[1]}, {KROW}, v{t[1]}
    v_lshrrev_b32 v{t[2]}, 5, v1
    v_lshl_add_u32 v{t[0]}, v{t[2]}, 4, s66
    v_add_u32 v{R.vA}, v{t[0]}, v{t[1]}
    v_and_b32 v{t[1]}, 31, v1
    v_mul_u32_u24 v{t[3]}, {KROW}, v{t[1]}
    v_add_u32 v{R.vB}, v{t[0]}, v{t[3]}
    v_add_u32 v{R.vB}, {27*KROW}, v{R.vB}
    v_cmp_gt_u32 s[70:71], 32, v1
    v_and_b32 v{t[3]}, 1, v1
    v_cmp_eq_u32 s[72:73], 1, v{t[3]}
    v_mov_b32 v{t[3]}, 0x01000504
    v_mov_b32 v{t[4]}, 0x05040504
    v_cndmask_b32 v{R.sel3}, v{t[3]}, v{t[4]}, s[72:73]
    v_mov_b32 v{t[3]}, 0x03020302
    v_cndmask_b32 v{R.sel1}, v{t[3]}, v{R.sel3}, s[70:71]
    v_mov_b32 v{t[3]}, 0x01000302
    v_mov_b32 v{t[4]}, 0x01000100
    v_cndmask_b32 v{R.sel2}, v{t[3]}, v{t[4]}, s[70:71]
    v_lshlrev_b32 v{t[1]}, 4, v{t[1]}
    v_lshlrev_b32 v{t[2]}, 9, v{t[2]}
    v_sub_u32 v{t[1]}, {4096-16}, v{t[1]}
    v_sub_u32 v{R.vS0}, v{t[1]}, v{t[2]}
    v_lshlrev_b32 v{t[2]}, 1, v{t[2]}
    v_subrev_u32 v{t[1]}, 2560, v{t[1]}
    v_add_u32 v{R.vS1}, v{t[1]}, v{t[2]}
    v_cmp_eq_u32 s[74:75], 0, v1
    s_add_u32 s67, s66, {CV_A}
    v_add_u32 v{R.vS0}, s67, v{R.vS0}
    v_add_u32 v{R.vS1}, s67, v{R.vS1}
    v_subrev_u32 v{R.vS3}, 3072, v{R.vS0}
    v_lshrrev_b32 v{t[2]}, 5, v1
    v_mul_u32_u24 v{t[2]}, {4224 - 128}, v{t[2]}
    v_add3_u32 v{R.vZ}, v{t[2]}, v{R.vP}, s67
    ''')


class KgenRegs:
    def __init__(self):
        ra = RegAlloc(2, 250)
        self.t = [ra.get() for _ in range(6)]
        self.vA, self.vB, self.sel1, self.sel2, self.sel3 = [ra.get() for _ in range(5)]
        self.vS0, self.vS1, self.vS3, self.vP, self.vZ = [ra.get() for _ in range(5)]
        self.par = [ra.get() for _ in range(6)]
        self.ldt, self.dsk, self.dt = ra.get(), ra.get(), ra.get()
        self.z1, self.z8, self.z16, self.z256 = [ra.get(2, 2) for _ in range(4)]
        self.er, self.ar = ra.get(), ra.get()
        self.x = [ra.get(2, 2) for _ in range(4)]
        self.w = [ra.get(2, 2) for _ in range(9)]
        self.c = [ra.get(2, 2) for _ in range(4)]
        self.pk = [ra.get() for _ in range(4)]
        self.fA = [ra.get(4, 4) for _ in range(8)]
        self.fB = [ra.get(4, 4) for _ in range(8)]
        self.acc = ra.get(16, 4)
        self.o = ra.get(16, 4)
        self.ut = [ra.get() for _ in range(5)]
        self.ud = ra.get(32, 4)


def kgen_load(a, R, sCH):
    t = R.t
    a(f'''
    s_lshl_b32 s67, s{sCH}, 8
    v_add_u32 v{t[0]}, s67, v{R.vP}
    s_lshl_b32 s67, s{sCH}, 1
    v_mov_b32 v{t[1]}, s67
    ''')
    for i in range(6):
        a(f'global_load_dword v{R.par[i]}, v{t[0]}, s[{sPAR+2*i}:{sPAR+2*i+1}]')
    a(f'global_load_ushort v{R.ldt}, v{t[1]}, s[{sPAR+12}:{sPAR+13}]')
    a(f'global_load_ushort v{R.dsk}, v{t[1]}, s[{sPAR+14}:{sPAR+15}]')


def dt_code(ldt, dt, t0, t1):
    import struct
    l2hi = f32bits(LOG2E)
    l2hi_f = struct.unpack('<f', struct.pack('<I', l2hi))[0]
    return f'''
    v_lshlrev_b32 v{ldt}, 16, v{ldt}
    s_mov_b32 s68, 0x{l2hi:08x}
    v_mul_f32 v{t0}, s68, v{ldt}
    v_fma_f32 v{t1}, v{ldt}, s68, -v{t0}
    v_exp_f32 v{t0}, v{t0}
    v_fmac_f32 v{t1}, {hexf(LOG2E - l2hi_f)}, v{ldt}
    v_mul_f32 v{t1}, {hexf(math.log(2.0))}, v{t1}
    v_fmac_f32 v{t0}, v{t0}, v{t1}
    v_cvt_pk_bf16_f32 v{t0}, v{t0}, v{t0}
    v_and_b32 v{dt}, 0xffff0000, v{t0}
    '''


def zpow(a, z, e, er, ar, t0, t1):
    if e == 1.0:
        a(f'v_exp_f32 v{t0}, v{er}\nv_fract_f32 v{t1}, v{ar}')
    else:
        a(f'''
        v_mul_f32 v{t0}, {hexf(e)}, v{er}
        v_mul_f32 v{t1}, {hexf(e)}, v{ar}
        v_exp_f32 v{t0}, v{t0}
        v_fract_f32 v{t1}, v{t1}
        ''')
    a(f'''
    v_cos_f32 v{z}, v{t1}
    v_sin_f32 v{z+1}, v{t1}
    v_mul_f32 v{z}, v{t0}, v{z}
    v_mul_f32 v{z+1}, v{t0}, v{z+1}
    ''')


def weave(a, groups, put):
    pend = []
    for grp in groups:
        for g in grp:
            if g[0]: a(g[0][0])
        for y in pend: a(y)
        for g in grp:
            if g[0]: a(g[0][1])
        st = [put(*g[1]) for g in grp if g[1]]
        for y in st: a(y[0])
        pend = [y[1] for y in st]
    for y in pend: a(y)


class KbRegs:
    def __init__(self):
        ra = RegAlloc(214, 242)
        self.z8, self.z16 = ra.get(2, 2), ra.get(2, 2)
        self.c = [ra.get(2, 2) for _ in range(4)]
        self.t = [ra.get() for _ in range(2)]
        self.er, self.ar, self.ldt, self.dt = [ra.get() for _ in range(4)]
        self.pk = [ra.get() for _ in range(4)]


def kgen_b_load(a, R, sU):
    a(f'''
    s_lshr_b32 s96, s{sU}, 1
    s_and_b32 s97, s{sU}, 1
    s_add_u32 s98, s96, s93
    s_lshl_b32 s99, s98, 7
    s_add_u32 s99, s99, s97
    s_lshl_b32 s99, s99, 1
    v_lshl_add_u32 v{R.t[0]}, v1, 2, s99
    s_lshl_b32 s98, s98, 1
    v_mov_b32 v{R.t[1]}, s98
    global_load_ushort v{R.er}, v{R.t[0]}, s[{sPAR}:{sPAR+1}]
    global_load_ushort v{R.ar}, v{R.t[0]}, s[{sPAR+2}:{sPAR+3}]
    global_load_ushort v{R.ldt}, v{R.t[1]}, s[{sPAR+12}:{sPAR+13}]
    s_mul_i32 s96, s96, {CV_SLOT}
    s_add_u32 s96, s96, s92
    s_cmp_eq_u32 s97, 0
    s_cselect_b32 s97, {CV_K + 27*KROW}, 0
    s_add_u32 s89, s96, s97
    ''')


def kgen_b(a, R):
    t = R.t
    a(dt_code(R.ldt, R.dt, t[0], t[1]))
    a(f'''
    s_mov_b32 m0, s89
    v_lshlrev_b32 v{R.er}, 16, v{R.er}
    v_lshlrev_b32 v{R.ar}, 16, v{R.ar}
    v_mul_f32 v{R.er}, v{R.dt}, v{R.er}
    v_mul_f32 v{R.ar}, v{R.dt}, v{R.ar}
    v_mul_f32 v{R.er}, s68, v{R.er}
    v_mul_f32 v{R.ar}, 0.15915494, v{R.ar}
    ''')
    zpow(a, R.z8, 8.0, R.er, R.ar, t[0], t[1])
    npk = [0]

    def put(reg, i):
        p = R.pk[npk[0] & 3]; npk[0] += 1
        return [f'v_cvt_pk_bf16_f32 v{p}, v{reg}, v{reg+1}', f'ds_write_addtid_b32 v{p} offset:{i*KROW}']
    a(f'v_mov_b32 v{t[0]}, 0x00003f80\nds_write_addtid_b32 v{t[0]}')
    c = R.c
    groups = [[(cmul(R.z16, R.z8, R.z8, True), (R.z16, 2)), ([], (R.z8, 1))]]
    p0, p1 = R.z16, R.z8
    for i in range(3, 32, 2):
        d1 = c[2 + ((i >> 1) & 1)]
        g = [(cmul(d1, p1, R.z16, True), (d1, i))]; p1 = d1
        if i + 1 < 32:
            d0 = c[(i >> 1) & 1]
            g.append((cmul(d0, p0, R.z16, True), (d0, i+1))); p0 = d0
        groups.append(g)
    weave(a, groups, put)
    a('s_waitcnt lgkmcnt(0)')


def kgen_compute(a, R):
    t = R.t
    a(dt_code(R.ldt, R.dt, t[0], t[1]))
    a(f'''
    v_lshlrev_b32 v{R.dsk}, 16, v{R.dsk}
    s_mov_b32 m0, s66
    s_mov_b32 s69, 0
    ''')
    Lp = a.newlabel('kpass')
    a.label(Lp)
    x = R.x
    a(f'''
    v_lshlrev_b32 v{R.er}, 16, v{R.par[0]}
    v_lshlrev_b32 v{R.ar}, 16, v{R.par[1]}
    v_lshlrev_b32 v{x[0]}, 16, v{R.par[2]}
    v_lshlrev_b32 v{x[0]+1}, 16, v{R.par[3]}
    v_lshlrev_b32 v{x[1]}, 16, v{R.par[4]}
    v_lshlrev_b32 v{x[1]+1}, 16, v{R.par[5]}
    v_mul_f32 v{R.er}, v{R.dt}, v{R.er}
    v_mul_f32 v{R.ar}, v{R.dt}, v{R.ar}
    v_mul_f32 v{x[0]}, v{R.dt}, v{x[0]}
    v_mul_f32 v{x[0]+1}, v{R.dt}, v{x[0]+1}
    v_mul_f32 v{R.er}, s68, v{R.er}
    v_mul_f32 v{R.ar}, 0.15915494, v{R.ar}
    ''')
    for y in cmul(R.w[0], x[0], x[1]):
        a(y)
    zpow(a, R.z1, 1.0, R.er, R.ar, t[0], t[1])
    zpow(a, R.z256, 256.0, R.er, R.ar, t[0], t[1])
    npk = [0]

    def put(reg, e):
        p = R.pk[npk[0] & 3]; npk[0] += 1
        return [f'v_cvt_pk_bf16_f32 v{p}, v{reg}, -v{reg+1}', f'ds_write_addtid_b32 v{p} offset:{EXPS.index(e)*KROW}']
    w = R.w
    sa = [([], (w[0], 0))]
    for j in range(1, 9):
        sa.append((cmul(w[j], w[j-1], R.z1), (w[j], j) if j < 8 else None))
    cur = {0: w[0], 2: w[2], 4: w[4], 6: w[6], 8: w[8]}
    spare = [w[1], w[3], w[5], w[7], x[0], x[1]]
    for base, js in ((256, (0, 2, 4, 6, 8)), (512, (0, 4, 8)), (768, (0, 4, 8)), (1024, (0, 8)), (1280, (0, 8)), (1536, (0, 8)), (1792, (0, 8))):
        for j in js:
            d = spare.pop(0)
            sa.append((cmul(d, cur[j], R.z256), (d, base+j)))
            spare.append(cur[j]); cur[j] = d
    groups = [[sa[0], sa[1]]] + [[y] for y in sa[2:10]] + [sa[k:k+2] for k in range(10, len(sa), 2)]
    weave(a, groups, put)
    a('s_barrier')
    for k in range(8):
        a(f'ds_read_b128 {v(R.fA[k],4)}, v{R.vA} offset:{32*k}')
        a(f'ds_read_b128 {v(R.fB[k],4)}, v{R.vB} offset:{32*k}')
    a(f'v_subrev_u32 v{R.vB}, {CV_K + 27*KROW}, v{R.vB}')
    for i in range(6):
        a(f'v_lshrrev_b32 v{R.par[i]}, 16, v{R.par[i]}')
    L1, Lj = a.newlabel('kacc'), a.newlabel('kj')
    a(f's_cmp_lg_u32 s69, 0\ns_cbranch_scc1 {L1}')
    for j in range(16):
        a(f'v_mov_b32 v{R.acc+j}, 0')
    a.label(L1)
    for k in range(8):
        a(f's_waitcnt lgkmcnt({min(14-2*k, 14)})')
        if k == 0: a('s_nop 0')
        a(f'v_mfma_f32_32x32x16_bf16 {v(R.acc,16)}, {v(R.fA[k],4)}, {v(R.fB[k],4)}, {v(R.acc,16)}')
    a(f'''
    s_add_u32 s69, s69, 1
    s_cmp_lt_u32 s69, 2
    s_cbranch_scc1 {Lp}
    v_cndmask_b32 v{R.dsk}, 0, v{R.dsk}, s[74:75]
    s_nop 9
    ''')
    g = R.acc; o = R.o
    blocks = []

    def put(d, va, off):
        a(f'''
        ds_write_b128 v{va}, {v(d,4)} offset:{off + 4224}
        ''')
        blocks.append((d, va, off))
    a(f'v_add_f32 v{g}, v{g}, v{R.dsk}')
    for j in range(4):
        a(f'v_cvt_pk_bf16_f32 v{o+j}, v{g+7-2*j}, v{g+6-2*j}')
    put(o, R.vS0, 0)
    for b, r in enumerate((8, 11)):
        d = o + 4 + 4*b
        a(f'''
        v_cvt_pk_bf16_f32 v{t[0]}, v{g+r}, v{g+r+1}
        v_cvt_pk_bf16_f32 v{d}, v{g+r+2}, v{g+r+2}
        v_cvt_pk_bf16_f32 v{d+3}, v{g+r}, v{g+r}
        v_perm_b32 v{d+1}, v{d}, v{t[0]}, v{R.sel1}
        v_perm_b32 v{d+2}, v{d}, v{t[0]}, v{R.sel2}
        ''')
        put(d, R.vS1, 512*(1-b))
    d = o + 12
    a(f'''
    v_cvt_pk_bf16_f32 v{d}, v{g+15}, v{g+15}
    v_cvt_pk_bf16_f32 v{d+2}, v{g+14}, v{g+14}
    v_cvt_pk_bf16_f32 v{d+3}, v{g+14}, v{g+14}
    v_perm_b32 v{d+1}, v{d}, v{d+2}, v{R.sel3}
    v_mov_b32 v{g+4}, 0
    v_mov_b32 v{g+5}, 0
    ''')
    put(d, R.vS3, 0)
    a(f'ds_write_b32 v{R.vZ}, v{g+4} offset:4096')
    for k, (d, va, off) in enumerate(blocks):
        a(f'ds_read_b32 v{t[k]}, v{va} offset:{off + 4224 + 16}')
    for k, (d, va, off) in enumerate(blocks):
        e = R.fA[k]
        for j in range(3):
            a(f'v_alignbit_b32 v{e+j}, v{d+j+1}, v{d+j}, 16')
        if k == 0: a('s_waitcnt lgkmcnt(0)')
        a(f'v_alignbit_b32 v{e+3}, v{t[k]}, v{d+3}, 16')
        a(f'ds_write_b128 v{va}, {v(e,4)} offset:{off}')


def u_issue(a, t, sSL):
    a(f'''
    s_mul_i32 s70, s{sSL}, {CV_SLOT}
    s_add_u32 s70, s70, s92
    s_add_u32 s69, s93, s{sSL}
    v_lshlrev_b32 v{t}, 4, v1
    s_add_u32 m0, s70, 512
    s_lshl_b32 s69, s69, 12
    s_add_u32 s69, s69, {WS_UT - 4}
    ''')
    for i in range(4):
        a(dma(SRD_WS, t, 's69', 1024*i))
    a(f's_add_u32 m0, s70, {4640 + 512}\ns_add_u32 s69, s69, 4')
    for i in range(4):
        a(dma(SRD_WS, t, 's69', 1024*i))
    a(f'''
    v_lshl_add_u32 v{t+1}, v1, 3, s70
    v_mov_b32 v{t+2}, 0
    v_mov_b32 v{t+3}, 0
    ds_write_b64 v{t+1}, {v(t+2,2)}
    ds_write_b64 v{t+1}, {v(t+2,2)} offset:4640
    v_mov_b32 v{t+1}, s70
    ''')


def u_fix(a, t):
    a(f'ds_write_b32 v{t+1}, v{t+2} offset:512')


def ut_issue(a, t, base):
    a(f'''
    s_lshr_b32 s64, s62, 1
    s_lshl_b32 s64, s64, 6
    s_mul_i32 s64, s64, 1152
    s_and_b32 s65, s62, 1
    s_mul_i32 s65, s65, 576
    s_add_u32 s64, s64, s65
    s_lshl_b32 s65, s3, 10
    ''')
    L = a.newlabel('utl')
    for i in range(5):
        if i == 4:
            a(f's_cmp_ge_u32 s3, 4\ns_cbranch_scc1 {L}')
        a(f'''
        v_add_u32 v{t[0]}, {512*i}, v0
        v_mul_u32_u24 v{t[1]}, 1821, v{t[0]}
        v_lshrrev_b32 v{t[1]}, 16, v{t[1]}
        v_mul_u32_u24 v{t[2]}, {1152-576}, v{t[1]}
        s_add_u32 m0, s65, {base + 8192*i}
        v_lshl_add_u32 v{t[2]}, v{t[0]}, 4, v{t[2]}
        ''')
        a(dma(SRD_U, t[2], 's64'))
    a.label(L)


UT_PRIV = 40960


def ut_setup(a, t):
    a(f'''
    v_lshrrev_b32 v{t[3]}, 5, v1
    v_bfe_u32 v{t[0]}, v1, 2, 2
    v_lshl_add_u32 v{t[0]}, v{t[3]}, 3, v{t[0]}
    v_mul_u32_u24 v{t[0]}, 576, v{t[0]}
    v_bfe_u32 v{t[2]}, v1, 4, 1
    v_lshl_add_u32 v{t[0]}, v{t[2]}, 5, v{t[0]}
    v_and_b32 v{t[2]}, 3, v1
    v_lshl_add_u32 v{t[0]}, v{t[2]}, 3, v{t[0]}
    s_lshl_b32 s64, s3, 6
    v_add_u32 v{t[0]}, s64, v{t[0]}
    v_and_b32 v{t[2]}, 7, v1
    v_xor_b32 v{t[3]}, v{t[3]}, v{t[2]}
    v_and_b32 v{t[1]}, 31, v1
    v_lshlrev_b32 v{t[1]}, 7, v{t[1]}
    v_lshl_add_u32 v{t[1]}, v{t[3]}, 4, v{t[1]}
    s_lshl_b32 s64, s3, 13
    s_add_u32 s64, s64, {UT_PRIV}
    v_add_u32 v{t[1]}, s64, v{t[1]}
    v_lshrrev_b32 v{t[3]}, 3, v1
    v_xor_b32 v{t[2]}, v{t[2]}, v{t[3]}
    v_lshlrev_b32 v{t[3]}, 12, v{t[3]}
    v_lshl_add_u32 v{t[3]}, v{t[2]}, 4, v{t[3]}
    v_lshl_add_u32 v{t[2]}, v1, 4, s64
    s_lshr_b32 s64, s62, 1
    s_lshl_b32 s64, s64, 7
    s_and_b32 s65, s62, 1
    s_mul_i32 s65, s65, 9
    s_add_u32 s65, s65, s3
    s_lshl_b32 s65, s65, 17
    s_add_u32 s65, s65, s64
    s_add_u32 s65, s65, {WS_UT}
    ''')


def ut_groups(a, t, d):
    ws = f's[{SRD_WS}:{SRD_WS+3}]'
    for k in range(8):
        gp, th = k >> 2, k & 3
        o = 16*th*576 + gp*320
        a(f'ds_read_b64_tr_b16 {v(d+4*k,2)}, v{t[0]} offset:{o}')
        a(f'ds_read_b64_tr_b16 {v(d+4*k+2,2)}, v{t[0]} offset:{o + 4*576}')
    for th in range(4):
        a(f'v_xor_b32 v{t[4]}, {32*th}, v{t[1]}')
        for gp in range(2):
            k = 4*gp + th
            if th == 0 and gp == 0:
                a('s_waitcnt lgkmcnt(0)')
            a(f'ds_write_b128 v{t[4]}, {v(d+4*k,4)} offset:{4096*gp}')
    for i in range(8):
        a(f'ds_read_b128 {v(d+4*i,4)}, v{t[2]} offset:{1024*i}')
    L = a.newlabel('utone')
    for i in range(8):
        if i == 4:
            a(f's_cmp_eq_u32 s3, 4\ns_cbranch_scc1 {L}')
        a(f's_add_u32 s64, s65, {(i&3)*32768 + (i>>2)*(5 << 17)}')
        a(f's_waitcnt lgkmcnt({7-i})')
        a(f'buffer_store_dwordx4 {v(d+4*i,4)}, v{t[3]}, {ws}, s64 offen{SC}')
    a.label(L)


class ConvRegs:
    def __init__(self):
        ra = RegAlloc(2, 250)
        self.t = [ra.get() for _ in range(6)]
        self.vA, self.vB = ra.get(), ra.get()
        self.z = ra.get(4, 4)
        self.A = [[ra.get(4, 4) for _ in range(8)] for _ in range(2)]
        self.B = [[ra.get(4, 4) for _ in range(8)] for _ in range(2)]
        self.acc = [ra.get(4, 4) for _ in range(8)]


def conv_addr(a, R):
    t = R.t
    a(f'''
    s_lshr_b32 s66, s3, 1
    s_add_u32 s64, s93, s66
    s_mul_i32 s66, s66, {CV_SLOT}
    s_add_u32 s66, s66, s92
    s_and_b32 s67, s3, 1
    v_lshlrev_b32 v{t[0]}, 4, v1
    v_and_b32 v{t[1]}, 15, v1
    v_lshrrev_b32 v{t[2]}, 4, v1
    v_and_b32 v{t[3]}, 1, v1
    v_lshrrev_b32 v{t[1]}, 1, v{t[1]}
    s_lshl_b32 s71, s67, 8
    s_sub_u32 s71, s66, s71
    v_mul_u32_u24 v{t[4]}, 4224, v{t[3]}
    v_lshl_add_u32 v{t[4]}, v{t[2]}, 4, v{t[4]}
    v_lshlrev_b32 v{t[5]}, 3, v{t[1]}
    v_sub_u32 v{t[4]}, v{t[4]}, v{t[5]}
    v_add_u32 v{t[4]}, {CV_K + CV_A + 2*2044 - 64*59}, v{t[4]}
    v_add_u32 v{R.vA}, s71, v{t[4]}
    v_mul_u32_u24 v{t[4]}, 4640, v{t[3]}
    v_lshl_add_u32 v{t[4]}, v{t[2]}, 4, v{t[4]}
    v_lshl_add_u32 v{t[4]}, v{t[1]}, 6, v{t[4]}
    v_add_u32 v{t[4]}, {512 - 192}, v{t[4]}
    v_add_u32 v{R.vB}, s71, v{t[4]}
    ''')


def conv_compute(a, R, hook):
    t = R.t

    def reads(r):
        b = r & 1
        L = []
        for p in range(8):
            L.append(f'ds_read_b128 {v(R.B[b][7-p],4)}, v{R.vB} offset:{64*(8*(7-p)+3-r)}')
            o = 64*(59-8*p-r)
            L.append(f'ds_read_b64 {v(R.A[b][p],2)}, v{R.vA} offset:{o}')
            L.append(f'ds_read_b64 {v(R.A[b][p]+2,2)}, v{R.vA} offset:{o+8}')
        return L
    for x in reads(0):
        a(x)
    for r in range(4):
        b = r & 1
        mf = []
        for p in range(8):
            for c in range(7, p-1, -1):
                C = '0' if (r == 0 and p == 0) else v(R.acc[c], 4)
                mf.append(f'v_mfma_f32_16x16x32_bf16 {v(R.acc[c],4)}, {v(R.A[b][p],4)}, {v(R.B[b][c-p],4)}, {C}')
        a('s_waitcnt lgkmcnt(0)')
        if r == HOOK_R: hook()
        nx = reads(r+1) if r < 3 else []
        for x in interleave(mf[:26], nx) + mf[26:]:
            a(x)
    a(f'''
    s_lshl_b32 s68, s3, 12
    s_xor_b32 s69, s68, 4096
    v_add_u32 v{t[0]}, {CV_XCH}, v{t[0]}
    v_add_u32 v{t[1]}, s69, v{t[0]}
    v_add_u32 v{t[0]}, s68, v{t[0]}
    v_and_b32 v{t[2]}, 15, v1
    v_lshrrev_b32 v{t[3]}, 4, v1
    v_lshlrev_b32 v{t[2]}, 5, v{t[2]}
    v_lshl_add_u32 v{t[2]}, v{t[3]}, 3, v{t[2]}
    s_lshl_b32 s68, s64, 12
    s_add_u32 s68, s68, {WS_YT}
    ''')


def conv_send(a, R, rh):
    for i in range(4):
        a(f'ds_write_b128 v{R.t[0]}, {v(R.acc[2*i+1-rh],4)} offset:{1024*i}')
    a('s_waitcnt lgkmcnt(0)')


def conv_finish(a, R, rh):
    ws = f's[{SRD_WS}:{SRD_WS+3}]'
    t = R.t
    for i in range(4):
        a(f'ds_read_b128 {v(R.A[0][i],4)}, v{t[1]} offset:{1024*i}')
    for i in range(4):
        c = 2*i + rh
        a(f's_waitcnt lgkmcnt({3-i})')
        for j in range(4):
            a(f'v_add_f32 v{R.acc[c]+j}, v{R.acc[c]+j}, v{R.A[0][i]+j}')
        a(f'v_cvt_pk_bf16_f32 v{R.B[0][i]}, v{R.acc[c]}, v{R.acc[c]+1}')
        a(f'v_cvt_pk_bf16_f32 v{R.B[0][i]+1}, v{R.acc[c]+2}, v{R.acc[c]+3}')
        a(f'buffer_store_dwordx2 {v(R.B[0][i],2)}, v{t[2]}, {ws}, s68 offen offset:{512*c}{SC}')


def yt_phase(a, t, d):
    out = f's[{SRD_OUT}:{SRD_OUT+3}]'
    a(f'''
    v_lshrrev_b32 v{t[0]}, 3, v1
    v_and_b32 v{t[1]}, 7, v1
    v_bfe_u32 v{t[2]}, v1, 4, 1
    v_lshlrev_b32 v{t[2]}, 2, v{t[2]}
    v_xor_b32 v{t[1]}, v{t[1]}, v{t[2]}
    v_lshlrev_b32 v{t[0]}, 12, v{t[0]}
    v_lshl_add_u32 v{t[0]}, v{t[1]}, 4, v{t[0]}
    s_and_b32 s70, s3, 3
    s_and_b32 s71, s{sIDX}, 7
    s_mul_i32 s71, s71, 9
    s_add_u32 s71, s71, s70
    s_lshl_b32 s72, s{sXCD}, 2
    s_lshr_b32 s73, s{sIDX}, 3
    s_add_u32 s72, s72, s73
    s_lshl_b32 s64, s71, 15
    s_lshl_b32 s65, s72, 7
    s_add_u32 s64, s64, s65
    s_add_u32 s64, s64, {WS_YT}
    s_mul_i32 s65, s70, 3072
    s_add_u32 s65, s65, {KV_HEAD}
    s_mov_b32 m0, s65
    s_nop 0
    ''')
    Ls = a.newlabel('ytskip')
    for i in range(3):
        if i == 2:
            a(f's_cmp_lg_u32 s70, 0\ns_cbranch_scc1 {Ls}')
        a(dma(SRD_WS, t[0], 's64'))
        if i < 2:
            a(f's_add_u32 m0, s65, {1024*(i+1)}\ns_add_u32 s64, s64, {4*32768}')
    a.label(Ls)
    a(f'''
    v_bfe_u32 v{t[1]}, v1, 2, 2
    v_lshrrev_b32 v{t[2]}, 4, v1
    v_bfe_u32 v{t[3]}, v1, 3, 1
    v_lshlrev_b32 v{t[3]}, 1, v{t[3]}
    v_xor_b32 v{t[3]}, v{t[3]}, v{t[2]}
    v_lshlrev_b32 v{t[1]}, 7, v{t[1]}
    v_lshl_add_u32 v{t[1]}, v{t[3]}, 5, v{t[1]}
    v_and_b32 v{t[3]}, 3, v1
    v_lshl_add_u32 v{t[1]}, v{t[3]}, 3, v{t[1]}
    v_add_u32 v{t[1]}, s65, v{t[1]}
    v_and_b32 v{t[3]}, 1, v1
    v_bfe_u32 v{t[0]}, v1, 1, 3
    v_lshl_add_u32 v{t[3]}, v{t[0]}, 2, v{t[3]}
    v_bfe_u32 v{t[0]}, v1, 4, 1
    v_lshl_add_u32 v{t[3]}, v{t[0]}, 1, v{t[3]}
    v_and_b32 v{t[0]}, 32, v1
    v_add_u32 v{t[3]}, v{t[3]}, v{t[0]}
    v_mul_u32_u24 v{t[3]}, 2304, v{t[3]}
    s_mul_i32 s64, s72, {64*2304}
    s_lshl_b32 s66, s71, 4
    s_add_u32 s64, s64, s66
    s_waitcnt vmcnt(0)
    ''')
    Le = a.newlabel('ytend')
    for i in range(3):
        if i == 2:
            a(f's_cmp_lg_u32 s70, 0\ns_cbranch_scc1 {Le}')
        r = d + 4*i
        a(f'ds_read_b64_tr_b16 {v(r,2)}, v{t[1]} offset:{1024*i}')
        a(f'ds_read_b64_tr_b16 {v(r+2,2)}, v{t[1]} offset:{1024*i + 512}')
        a('s_waitcnt lgkmcnt(0)')
        a(f'buffer_store_dwordx4 {v(r,4)}, v{t[3]}, {out}, s64 offen offset:{64*i}{OUTA}')
    a.label(Le)
```

```python
import sys
from asmlib import *
from layout import *
import phases
from phases import *
import ssm
from ssm import *

NAME = 'concat_heads__ssm_conv_s4__mha_block__prompt'
LDS = 163840
DBGCOPY = None
OPT = {}
SPIN_MAX = 1 << 16
FA, FB, FC = WS_FLAG, WS_FLAG + 32768, WS_FLAG + 65536
SLEEP = 2
UEARLY = 1
sFA, sFB, sFC = 84, 85, 86
vSY = 242
vTAG = 250
ws = f's[{SRD_WS}:{SRD_WS+3}]'


def descriptor(name, vgpr=256):
    return f'''.amdhsa_kernel {name}
  .amdhsa_next_free_vgpr {vgpr}
  .amdhsa_next_free_sgpr 102
  .amdhsa_accum_offset {vgpr}
  .amdhsa_group_segment_fixed_size 0
  .amdhsa_kernarg_size 120
  .amdhsa_user_sgpr_count 2
  .amdhsa_user_sgpr_kernarg_segment_ptr 1
  .amdhsa_system_sgpr_workgroup_id_x 1
.end_amdhsa_kernel
'''


def flags_setup(a):
    a(f'''
    s_mul_i32 s{sFB}, s{sXCD}, 24
    s_add_u32 s{sFB}, s{sFB}, s{sIDX}
    s_lshl_b32 s87, s{sXCD}, 3
    s_add_u32 s87, s87, s{sIDX}
    s_add_u32 s87, s87, {192 - 24}
    s_cmp_lt_u32 s{sIDX}, 24
    s_cselect_b32 s{sFB}, s{sFB}, s87
    s_lshl_b32 s{sFB}, s{sFB}, 7
    s_add_u32 s{sFB}, s{sFB}, {FB}
    s_and_b32 s{sFC}, s{sIDX}, 7
    s_lshl_b32 s{sFC}, s{sFC}, 5
    s_lshl_b32 s87, s{sXCD}, 2
    s_add_u32 s{sFC}, s{sFC}, s87
    s_lshr_b32 s87, s{sIDX}, 3
    s_add_u32 s{sFC}, s{sFC}, s87
    s_lshl_b32 s{sFC}, s{sFC}, 7
    s_add_u32 s{sFC}, s{sFC}, {FC}
    ''')


def code_prefetch_early(a):
    L, Lpc = a.newlabel('pf'), a.newlabel('pc')
    a(f'''
    s_cmp_ge_u32 s2, 16
    s_cbranch_scc1 {L}
    s_getpc_b64 s[96:97]
    ''')
    a.label(Lpc)
    a(f'''
    s_sub_u32 s96, s96, {Lpc}-{NAME}_kernel
    s_subb_u32 s97, s97, 0
    v_lshlrev_b32 v{vSY+6}, 7, v0
    v_min_u32 v{vSY+6}, L_code_end-{NAME}_kernel-4, v{vSY+6}
    global_load_dword v{vSY+7}, v{vSY+6}, s[96:97]
    ''')
    a.label(L)


def code_prefetch(a):
    L, Lpc = a.newlabel('pf'), a.newlabel('pc')
    a(f'''
    s_cmp_lg_u32 s3, 6
    s_cbranch_scc1 {L}
    s_getpc_b64 s[96:97]
    ''')
    a.label(Lpc)
    a(f'''
    s_sub_u32 s96, s96, {Lpc}-{NAME}_kernel
    s_subb_u32 s97, s97, 0
    s_and_b32 s98, s{sIDX}, 7
    s_lshl_b32 s98, s98, 13
    v_lshl_add_u32 v{vSY+6}, v1, 7, s98
    v_min_u32 v{vSY+6}, L_code_end-{NAME}_kernel-4, v{vSY+6}
    global_load_dword v{vSY+7}, v{vSY+6}, s[96:97]
    ''')
    a.label(L)


def tag_load(a):
    L = a.newlabel('tld')
    a(f'''
    v_mov_b32 v{vSY}, 0
    s_lshl_b32 s87, s2, 3
    s_add_u32 s87, s87, s3
    s_cmp_lg_u32 s87, 7
    s_cbranch_scc1 {L}
    s_mov_b32 s87, {WS_NONCE}
    buffer_load_dwordx2 v[{vSY+2}:{vSY+3}], v{vSY}, {ws}, s87 offen sc1
    ''')
    a.label(L)


def tag_publish(a):
    L = a.newlabel('tpub')
    a(f'''
    s_lshl_b32 s87, s2, 3
    s_add_u32 s87, s87, s3
    s_cmp_lg_u32 s87, 7
    s_cbranch_scc1 {L}
    v_add_u32 v{vSY+2}, 1, v{vSY+2}
    v_max_u32 v{vSY+2}, 1, v{vSY+2}
    s_mov_b32 s87, {WS_NONCE}
    s_mov_b64 exec, 1
    global_store_dwordx2 v{vSY}, v[{vSY+2}:{vSY+3}], s[{sDBG}:{sDBG+1}] sc1
    buffer_store_dwordx2 v[{vSY+2}:{vSY+3}], v{vSY}, {ws}, s87 offen sc1
    s_mov_b64 exec, -1
    ''')
    a.label(L)


def tag_get(a):
    a(f'v_mov_b32 v{vSY+4}, 0')
    spin(a, f'global_load_dwordx2 v[{vTAG}:{vTAG+1}], v{vSY+4}, s[{sDBG}:{sDBG+1}] sc1', f'v_cmp_eq_u32 vcc, 0, v{vTAG}')


def flag_set(a, sF, wave):
    L = a.newlabel('fset')
    a(f'''
    s_cmp_lg_u32 s3, {wave}
    s_cbranch_scc1 {L}
    v_mov_b32 v{vSY}, 0
    s_mov_b64 exec, 1
    buffer_store_dwordx2 v[{vTAG}:{vTAG+1}], v{vSY}, {ws}, s{sF} offen sc1
    s_mov_b64 exec, -1
    ''')
    a.label(L)


def spin(a, load, test):
    L, Ld = a.newlabel('spin'), a.newlabel('spun')
    a('s_mov_b32 s87, 0')
    a.label(L)
    a(load)
    a('s_waitcnt vmcnt(0)')
    a(test)
    a(f'''
    s_add_u32 s87, s87, 1
    s_cbranch_vccz {Ld}
    s_sleep {SLEEP}
    s_cmp_lt_u32 s87, {SPIN_MAX}
    s_cbranch_scc1 {L}
    ''')
    a.label(Ld)


flag_ld = f'buffer_load_dwordx2 v[{vSY+2}:{vSY+3}], v{vSY+5}, {ws}, s88 offen sc1'
flag_test = f'v_cmp_ne_u64 vcc, v[{vTAG}:{vTAG+1}], v[{vSY+2}:{vSY+3}]'


def u_fetch(a, sSL):
    a(f'''
    v_and_b32 v{vSY+5}, 31, v1
    v_lshlrev_b32 v{vSY+5}, 8, v{vSY+5}
    s_add_u32 s88, s93, s{sSL}
    s_cmp_ge_u32 s88, 288
    s_cselect_b32 s88, 128, 0
    s_add_u32 s88, s88, {FA + 128*192}
    ''')
    spin(a, flag_ld, flag_test)
    u_issue(a, 196, sSL)


def p1_body(a, join, ST):
    Lssm, Lv, Lld, Lkg, Lfl = [a.newlabel(x) for x in ('ssm', 'v', 'ld', 'kg', 'flush')]
    R = KgenRegs()
    Lkb = a.newlabel('kb')
    def kb():
        a(f's_getpc_b64 s[100:101]\ns_branch {Lkb}')
    Lnl = a.newlabel('nold')
    KB = KbRegs()
    gscal = f'''
    s_lshl_b32 s{sFA}, s63, 4
    s_add_u32 s{sFA}, s{sFA}, s62
    s_lshl_b32 s{sFA}, s{sFA}, 7
    s_add_u32 s{sFA}, s{sFA}, {FA}
    s_mov_b32 s92, 110592
    s_mul_i32 s93, s{sXCD}, 24
    s_add_u32 s93, s93, s{sIDX}
    s_lshl_b32 s93, s93, 1
    s_mov_b32 s94, 4
    s_sub_u32 s91, s3, 6
    '''
    a(f's_cmp_ge_u32 s{sIDX}, 24\ns_cbranch_scc1 {Lssm}')
    gemm_setup(a)
    a(f's_and_b32 s64, s3, 6\ns_cmp_lg_u32 s64, 4\ns_cbranch_scc1 {Lnl}')
    gemm_loader(a, ST)
    a(gscal)
    flags_setup(a)
    gemm_scalars(a)
    tag_get(a)
    a('s_barrier')
    gemm_flush(a)
    a(f's_branch {join}')
    a.label(Lnl)
    a(gscal)
    a(f's_cmp_ge_u32 s3, 6\ns_cbranch_scc1 {Lkg}')
    kgen_b_load(a, KB, 3)
    gemm_scalars(a)
    a(f's_cmp_ge_u32 s63, 8\ns_cbranch_scc1 {Lv}')
    gemm_compute(a, 'qk', ST, kb); a(f's_branch {join}')
    a.label(Lv)
    gemm_compute(a, 'v', ST, kb); a(f's_branch {join}')
    a.label(Lssm)
    a(f'''
    s_lshl_b32 s62, s{sXCD}, 3
    s_add_u32 s62, s62, s{sIDX}
    s_sub_u32 s62, s62, 24
    s_lshl_b32 s{sFA}, s62, 7
    s_add_u32 s{sFA}, s{sFA}, {FA + 128*192}
    s_mov_b32 s92, 81920
    s_mul_i32 s93, s62, 3
    s_add_u32 s93, s93, 384
    s_mov_b32 s94, 6
    s_sub_u32 s91, s3, 5
    ''')
    ut_issue(a, R.ut, 0)
    a(f's_cmp_ge_u32 s3, 5\ns_cbranch_scc1 {Lkg}')
    kgen_b_load(a, KB, 3)
    flags_setup(a)
    ut_setup(a, R.ut)
    kb()
    Lk2 = a.newlabel('kb2')
    a(f's_cmp_lg_u32 s3, 0\ns_cbranch_scc1 {Lk2}\ns_mov_b32 s80, 5')
    kgen_b_load(a, KB, 80)
    kb()
    a.label(Lk2)
    a('s_barrier')
    stamp(a, 1, ST)
    ut_groups(a, R.ut, R.ud)
    tag_get(a)
    a('s_barrier')
    flag_set(a, sFA, 0)
    stamp(a, 2, ST)
    a('s_barrier\n' * 8)
    a(f's_branch {join}')
    a.label(Lkb)
    a('s_waitcnt vmcnt(0)')
    kgen_b(a, KB)
    a('s_add_u32 s100, s100, 4\ns_addc_u32 s101, s101, 0\ns_setpc_b64 s[100:101]')
    a.label(Lkg)
    a(f'''
    s_mul_i32 s66, s91, {CV_SLOT}
    s_add_u32 s66, s66, s92
    s_add_u32 s66, s66, {CV_K}
    s_mov_b32 s95, s91
    s_add_u32 s91, s91, s93
    v_lshlrev_b32 v{R.vP}, 2, v1
    ''')
    tag_load(a)
    kgen_load(a, R, 91)
    if OPT.get('latepf'): code_prefetch(a)
    kgen_setup(a, R)
    a('s_waitcnt vmcnt(0)')
    tag_publish(a)
    stamp(a, 1, ST)
    if OPT.get('kprio'): a(f"s_setprio {OPT['kprio']}")
    nb = 2
    if OPT.get('nokgen'): a('s_barrier\n' * nb)
    else: kgen_compute(a, R)
    if OPT.get('kprio'): a('s_setprio 0')
    stamp(a, 2, ST)
    a('s_barrier')
    tag_get(a)
    a('s_barrier\n' * (8 - nb - UEARLY))
    u_fetch(a, 95)
    a('s_barrier\n' * UEARLY)
    a('s_waitcnt vmcnt(0)')
    u_fix(a, 196)
    a('s_waitcnt lgkmcnt(0)\ns_barrier')


def build(ST=False):
    a = Asm()
    ref = open('cdna_kernels/%s.s.ref' % NAME).read().split('\n')
    head = [l for l in ref if l.startswith(';') and '@launch' not in l and 'Override launch' not in l and 'grid=ceil' not in l]
    a.lines += head
    a.lines.append(f'; @launch grid=(256,1,1) block=(512,1,1) lds={LDS}')
    K = NAME + '_kernel'
    a(f'.amdgcn_target "amdgcn-amd-amdhsa--gfx950"\n.text\n.globl {K}\n.p2align 8\n.type {K},@function')
    a.label(K)
    prologue(a, 'L_end', None if OPT.get('latepf') else lambda: code_prefetch_early(a))
    stamp(a, 0, ST)
    p1_body(a, 'L_join', ST)
    a.label('L_join')
    C = ConvRegs()
    conv_addr(a, C)
    attn_setup(a)
    Lidle, L1, Lload, Lcend = [a.newlabel(x) for x in ('cidle', 'c1', 'cload', 'cend')]
    a(f's_cmp_ge_u32 s3, 6\ns_cbranch_scc1 {Lload}')
    a(f's_cmp_ge_u32 s3, s94\ns_cbranch_scc1 {Lidle}')
    conv_compute(a, C, lambda: a('s_waitcnt vmcnt(0)\ns_barrier'))
    stamp(a, 13, ST)
    a(f's_cmp_eq_u32 s67, 1\ns_cbranch_scc1 {L1}')
    conv_send(a, C, 0); a('s_barrier'); conv_finish(a, C, 0); a(f's_branch {Lcend}')
    a.label(L1)
    conv_send(a, C, 1); a('s_barrier'); conv_finish(a, C, 1); a(f's_branch {Lcend}')
    a.label(Lidle)
    a('s_waitcnt vmcnt(0)\ns_barrier')
    flag_set(a, sFA, 5)
    stamp(a, 4, ST)
    a(f's_barrier\ns_branch {Lcend}')
    a.label(Lload)
    a(f'''
    v_and_b32 v{vSY+6}, 15, v1
    v_lshrrev_b32 v{vSY+7}, 4, v1
    v_min_u32 v{vSY+7}, 2, v{vSY+7}
    v_and_b32 v{vSY+5}, 1, v1
    s_lshl_b32 s64, s63, 1
    v_add_u32 v{vSY+5}, s64, v{vSY+5}
    v_cmp_eq_u32 s[64:65], 0, v{vSY+7}
    v_lshlrev_b32 v{vSY+7}, 6, v{vSY+7}
    s_lshr_b32 s66, s62, 3
    v_cndmask_b32 v{vSY+5}, v{vSY+6}, v{vSY+5}, s[64:65]
    v_add_u32 v{vSY+5}, v{vSY+5}, v{vSY+7}
    v_lshlrev_b32 v{vSY+5}, 7, v{vSY+5}
    s_lshl_b32 s88, s66, 11
    s_add_u32 s88, s88, {FA}
    v_lshlrev_b32 v2, 4, v1
    s_barrier
    ''')
    spin(a, flag_ld, flag_test)
    stamp(a, 12, ST)
    kv_first(a, 2)
    a('s_barrier\ns_waitcnt vmcnt(0)')
    a.label(Lcend)
    a('s_barrier')
    stamp(a, 14, ST)
    Lhelp, Lz = a.newlabel('help'), a.newlabel('z')
    a(f's_cmp_ge_u32 s3, 4\ns_cbranch_scc1 {Lhelp}')
    R = AttnRegs()
    redo = attn_phase(a, R, ST)
    a(f's_cmp_ge_u32 s{sIDX}, 24\ns_cbranch_scc1 L_end')
    out_setup(a)
    a(f's_branch {Lz}')
    a.label(Lhelp)
    O = OutRegs()
    a('v_lshlrev_b32 v2, 4, v1')
    kv_rest(a, 2)
    a('s_waitcnt vmcnt(24)\ns_barrier')
    a(f'''
    s_and_b32 s64, s{sIDX}, 7
    s_mul_i32 s64, s64, 72
    v_min_u32 v4, 35, v1
    v_lshl_add_u32 v4, v4, 1, s64
    v_subrev_u32 v5, 384, v4
    v_mul_u32_u24 v5, 171, v5
    v_lshrrev_b32 v5, 9, v5
    v_add_u32 v5, 192, v5
    s_movk_i32 s64, 384
    v_cmp_gt_u32 s[64:65], s64, v4
    v_lshrrev_b32 v4, 1, v4
    s_mov_b32 s88, {FB}
    v_cndmask_b32 v4, v5, v4, s[64:65]
    v_lshlrev_b32 v{vSY+5}, 7, v4
    v_mov_b32 v4, {VOTE}
    v_mov_b32 v5, 0
    ds_write_b32 v4, v5
    s_waitcnt vmcnt(0) lgkmcnt(0)
    s_barrier
    ''')
    flag_set(a, sFB, 4)
    a('s_sleep 32')
    spin(a, flag_ld, flag_test)
    yt_phase(a, [4, 5, 6, 7], 8)
    a('s_mov_b32 s90, s62')
    out_setup(a)
    out_wo_addr(a, O)
    Lnw, Lhr, Lhz = a.newlabel('nowo'), a.newlabel('hredo'), a.newlabel('hz')
    a(f's_barrier\ns_cmp_ge_u32 s{sIDX}, 24\ns_cbranch_scc1 {Lnw}')
    out_issue_wo(a, O)
    a.label(Lnw)
    a(f'''
    v_mov_b32 v{vSY}, {VOTE}
    s_waitcnt vmcnt(0)
    s_barrier
    ds_read_b32 v{vSY+1}, v{vSY}
    s_waitcnt lgkmcnt(0)
    v_readfirstlane_b32 s64, v{vSY+1}
    s_cmp_lg_u32 s64, 0
    s_cbranch_scc1 {Lhr}
    ''')
    a.label(Lhz)
    flag_set(a, sFC, 4)
    a(f's_cmp_ge_u32 s{sIDX}, 24\ns_cbranch_scc1 L_end')
    a.label(Lz)
    stamp(a, 8, ST)
    a(f'''
    v_and_b32 v{vSY+5}, 31, v1
    v_lshlrev_b32 v{vSY+5}, 7, v{vSY+5}
    s_lshr_b32 s88, s62, 2
    s_lshl_b32 s88, s88, 12
    s_add_u32 s88, s88, {FC}
    ''')
    out_o_addr(a, O)
    out_preload(a, O)
    Lp = a.newlabel('nopoll')
    a(f's_cmp_lg_u32 s3, 4\ns_cbranch_scc1 {Lp}')
    spin(a, flag_ld, flag_test)
    a.label(Lp)
    a('s_barrier')
    out_issue_o(a, O)
    out_phase(a, O, ST)
    if DBGCOPY is not None:
        a(f'''
        s_add_u32 s64, s2, s3
        s_cmp_lg_u32 s64, 0
        s_cbranch_scc1 L_end
        s_waitcnt vmcnt(0)
        v_lshlrev_b32 v2, 3, v1
        v_lshlrev_b32 v3, 2, v1
        s_mov_b32 s64, {WS_STAMP + DBGCOPY*128}
        s_mov_b64 exec, 0xffff
        buffer_load_dword v4, v2, {ws}, s64 offen sc0 sc1
        s_waitcnt vmcnt(0)
        v_readfirstlane_b32 s64, v4
        s_nop 3
        v_subrev_u32 v4, s64, v4
        global_store_dword v3, v4, s[{sDBG}:{sDBG+1}]
        ''')
    a.label('L_end'); a('s_endpgm')
    redo()
    a.label(Lhr)
    Lnw2 = a.newlabel('nowo2')
    a(f'''
    s_waitcnt vmcnt(0)
    s_mov_b32 s91, s62
    s_mov_b32 s62, s90
    v_lshlrev_b32 v{vSY}, 4, v1
    ''')
    kv_rest(a, vSY, 0)
    a(f'''
    s_mov_b32 s62, s91
    s_waitcnt vmcnt(0)
    s_barrier
    s_barrier
    s_cmp_ge_u32 s{sIDX}, 24
    s_cbranch_scc1 {Lnw2}
    ''')
    out_issue_wo(a, O)
    a.label(Lnw2)
    a(f's_waitcnt vmcnt(0)\ns_barrier\ns_branch {Lhz}')
    a.label('L_code_end')
    a('.section .rodata,"a"')
    return a.text() + '.p2align 6\n' + descriptor(K)


if __name__ == '__main__':
    st = 2 if '--rt' in sys.argv else (1 if '--stamp' in sys.argv else 0)
    for x in sys.argv:
        if x.startswith('--copy='): DBGCOPY = int(x[7:])
        if x == '--pk': ssm.PK = True
        if x == '--light': phases.LIGHT = True
        if x.startswith('--hook='): ssm.HOOK_R = int(x[7:])
        if x.startswith('--ue='): UEARLY = int(x[5:])
        if x.startswith('--sleep='): SLEEP = int(x[8:])
        if x.startswith('--outa='): ssm.OUTA = ' ' + x[7:].replace('_', ' ')
        if x.startswith('--outb='): phases.OUTB = ' ' + x[7:].replace('_', ' ')
        if x == '--ls': phases.LSTAMP = True
        if x.startswith('--rot='): phases.ROT = int(x[6:])
        if x.startswith('--o:'): OPT[x[4:].split('=')[0]] = int(x.split('=')[1])
    out = [x for x in sys.argv[1:] if not x.startswith('--')]
    path = out[0] if out else 'cdna_kernels/%s.s' % NAME
    open(path, 'w').write(build(st))
    print('wrote', path)
```

```python
import sys, os, subprocess, struct, ctypes
sys.path.insert(0, 'cdna_kernels')
import numpy as np
import cdna_launch as cl

HDR = """; @launch grid=({grid},1,1) block=({block},1,1) lds={lds}
.amdgcn_target "amdgcn-amd-amdhsa--gfx950"
.text
.globl mb_kernel
.p2align 8
.type mb_kernel,@function
mb_kernel:
    s_load_dwordx2 s[4:5], s[0:1], 0
    s_load_dwordx2 s[6:7], s[0:1], 8
    s_waitcnt lgkmcnt(0)
    s_mov_b32 s8, s4
    s_mov_b32 s9, s5
    s_mov_b32 s10, {inbytes}
    s_mov_b32 s11, 0x00020000
    s_mov_b32 s12, s6
    s_mov_b32 s13, s7
    s_mov_b32 s14, {outbytes}
    s_mov_b32 s15, 0x00020000
{pre}
    s_mov_b32 s20, {iters}
    s_barrier
    s_memtime s[16:17]
    s_waitcnt lgkmcnt(0)
.p2align 6
L_loop:
{body}
    s_sub_u32 s20, s20, 1
    s_cmp_lg_u32 s20, 0
    s_cbranch_scc1 L_loop
    s_waitcnt vmcnt(0) lgkmcnt(0)
    s_memtime s[18:19]
    s_waitcnt lgkmcnt(0)
    s_sub_u32 s18, s18, s16
    s_subb_u32 s19, s19, s17
{post}
    v_lshrrev_b32 v1, 6, v0
    s_lshl_b32 s3, s2, {wshift}
    v_add_u32 v1, s3, v1
    v_lshlrev_b32 v1, 2, v1
    v_mov_b32 v2, s18
    v_and_b32 v3, 63, v0
    v_cmp_eq_u32 vcc, 0, v3
    s_and_saveexec_b64 s[22:23], vcc
    buffer_store_dword v2, v1, s[12:15], 0 offen
    s_waitcnt vmcnt(0)
    s_endpgm
.section .rodata,"a"
.p2align 6
.amdhsa_kernel mb_kernel
  .amdhsa_next_free_vgpr {nvgpr}
  .amdhsa_next_free_sgpr 96
  .amdhsa_accum_offset {accum}
  .amdhsa_group_segment_fixed_size 0
  .amdhsa_kernarg_size 16
  .amdhsa_user_sgpr_count 2
  .amdhsa_user_sgpr_kernarg_segment_ptr 1
  .amdhsa_system_sgpr_workgroup_id_x 1
.end_amdhsa_kernel
"""

def build(name, body, pre='', post='', grid=256, block=256, lds=0, iters=1000, nvgpr=128, accum=None, inbytes=1<<24, outbytes=1<<20):
    nw = block // 64
    wshift = {1:0,2:1,4:2,8:3,16:4}[nw]
    if accum is None: accum = min(256, (nvgpr+3)//4*4)
    asm = HDR.format(grid=grid, block=block, lds=lds, pre=pre, body=body, post=post, iters=iters,
                     nvgpr=nvgpr, accum=accum, wshift=wshift, inbytes=inbytes, outbytes=outbytes)
    asm = cl.with_harness_metadata(asm, 'mb_kernel', 2)
    open(f'/tmp/{name}.s','w').write(asm)
    r = subprocess.run(['clang','-x','assembler','-target','amdgcn-amd-amdhsa','-mcpu=gfx950',
                        f'/tmp/{name}.s','-o',f'/tmp/{name}.co'], capture_output=True, text=True)
    if r.returncode != 0:
        print(r.stderr); raise SystemExit(1)
    return f'/tmp/{name}.co'

_bufs = {}
def run(name, body, pre='', post='', grid=256, block=256, lds=0, iters=1000, nvgpr=128, accum=None, reps=3, indata=None):
    co = build(name, body, pre, post, grid, block, lds, iters, nvgpr, accum)
    if not os.path.exists('/dev/kfd'):
        print(name, 'assembled'); return None
    if 'in' not in _bufs:
        rng = np.random.default_rng(0)
        a = (rng.standard_normal(1<<22).astype(np.float32))
        _bufs['in'] = cl.DeviceBuffer.from_numpy(a)
        _bufs['out'] = cl.DeviceBuffer(1<<20)
    k = cl.AsmKernel(co, 'mb_kernel')
    ka = cl.pack_ptr_kernargs([_bufs['in'].ptr, _bufs['out'].ptr])
    res = None
    for r in range(reps):
        k.launch((grid,1,1),(block,1,1),ka,lds)
        cl._check(cl._hip.hipDeviceSynchronize())
        res = _bufs['out'].to_numpy(np.uint32,(1<<18,))[:grid*(block//64)]
    k.unload()
    c = res.astype(np.float64)/iters
    print(f'{name:40s} grid={grid} block={block} cyc/iter: min {c.min():.1f} med {np.median(c):.1f} max {c.max():.1f}')
    return res
```

```python
import mbrun, os
from mbrun import run
import numpy as np
U=8
init = '\n'.join(f'    v_mov_b32 v{i}, 1.0' for i in range(8,64))
def R(name, bodyB, extra=''):
    pre = init + f'''
    v_and_b32 v4, 63, v0
    v_lshlrev_b32 v5, 4, v4
    v_lshrrev_b32 v1, 8, v0
    s_nop 1
    v_readfirstlane_b32 s30, v1
    s_mov_b32 s40, s4
    s_or_b32 s41, s5, 0x00100000
    s_mov_b32 s42, 0x100000
    s_mov_b32 s43, 0x00820000
    s_mov_b32 m0, 0
    s_mov_b32 s33, 0
{extra}
'''
    exp16='\n'.join(f'    v_exp_f32 v{16+i}, v{40+i}' for i in range(16))
    body = f'''
    s_cmp_eq_u32 s30, 0
    s_cbranch_scc0 L_B
''' + '\n'.join([exp16]*U) + '''
    s_branch L_E
L_B:
''' + bodyB + '''
L_E:
'''
    r = run(name, body, pre=pre, block=512, iters=50, lds=8192)
    if r is not None:
        r = r.reshape(-1,8)/50
        print(f'      A: {np.median(r[:,:4]):.1f}  B: {np.median(r[:,4:]):.1f}')
w='    s_waitcnt vmcnt(4)\n    s_sleep 8\n'
R('idle', '    s_sleep 14\n')
R('offen4', '\n'.join(['    buffer_load_dwordx4 v5, s[8:11], s33 offen lds']*4)+'\n'+w)
R('offen8', '\n'.join(['    buffer_load_dwordx4 v5, s[8:11], s33 offen lds']*8)+'\n'+w)
R('addtid4', '\n'.join(['    buffer_load_dwordx4 off, s[40:43], s33 lds']*4)+'\n'+w)
R('addtid8', '\n'.join(['    buffer_load_dwordx4 off, s[40:43], s33 lds']*8)+'\n'+w)
R('salu16', '\n'.join(['    s_add_u32 s34, s34, 1']*16)+'\n    s_sleep 12\n')
R('dsread8', '\n'.join(['    ds_read_b64 v[60:61], v5']*8)+'\n    s_waitcnt lgkmcnt(0)\n    s_sleep 12\n')
```
